```python
import torch

def _softmax(x, axis=-1):
    return torch.softmax(x, dim=axis)
def _gelu(x):
    return torch.nn.functional.gelu(x, approximate="tanh")
def _silu(x):
    return torch.nn.functional.silu(x)
def _sigmoid(x):
    return torch.sigmoid(x)
def _layernorm(x, axis=-1, eps=1e-5):
    m = x.mean(dim=axis, keepdim=True)
    v = x.var(dim=axis, keepdim=True, unbiased=False)
    return (x - m) / torch.sqrt(v + eps)
def _scatter_add(tgt, idx, src, axis=0):
    return tgt.clone().index_add_(axis, idx, src)
def _segment_sum(src, seg, n):
    out = torch.zeros((n,) + src.shape[1:], dtype=src.dtype)
    return out.index_add_(0, seg, src)
def _pad(x, pw):
    flat = tuple(v for pair in reversed(pw) for v in pair)
    return torch.nn.functional.pad(x, flat)

kernel_name = 'recurrent_scan__ssm_conv_s5__glu_gated_swiglu__prompt'

def setup_inputs():

    _w = (lambda a: (lambda t: t.to(torch.bfloat16) if t.is_floating_point() else t)(torch.as_tensor(a)))
    def _A_setup():
        B, S, D = 1, 2048, 640
        P = D
        Lambda_re = -0.5 * (lambda _x: torch.exp(torch.as_tensor(_x)))((lambda *s: torch.randn(*s, dtype=torch.bfloat16) * 0.8)(P))
        Lambda_im = (lambda *s: torch.randn(*s, dtype=torch.bfloat16) * 0.8)(P) * 1.0
        B_re = (lambda *s: torch.randn(*s, dtype=torch.bfloat16) * 0.8)(P, D) * (D ** -0.5)
        B_im = (lambda *s: torch.randn(*s, dtype=torch.bfloat16) * 0.8)(P, D) * (D ** -0.5)
        C_re = (lambda *s: torch.randn(*s, dtype=torch.bfloat16) * 0.8)(D, P) * (P ** -0.5)
        C_im = (lambda *s: torch.randn(*s, dtype=torch.bfloat16) * 0.8)(D, P) * (P ** -0.5)
        log_dt = (lambda *s: torch.randn(*s, dtype=torch.bfloat16) * 0.8)(P) * 0.3 - 2.0
        Dskip = (lambda *s: torch.randn(*s, dtype=torch.bfloat16) * 0.8)(D)
        return {
            "x": _w((lambda *s: torch.randn(*s, dtype=torch.bfloat16) * 0.05)(B, S, D)),
            "Lambda_re": _w(Lambda_re),
            "Lambda_im": _w(Lambda_im),
            "B_re": _w(B_re),
            "B_im": _w(B_im),
            "C_re": _w(C_re),
            "C_im": _w(C_im),
            "log_dt": _w(log_dt),
            "Dskip": _w(Dskip),
        }
    _A_in = _A_setup()

    def _B_setup():
        B, S, D, F = 1, 2048, 640, 1728
        return {
            "x": _w((lambda *s: torch.randn(*s, dtype=torch.bfloat16) * 0.05)(B, S, D)),
            "w1": _w((lambda *s: torch.randn(*s, dtype=torch.bfloat16) * 0.2)(D, F) * (2.0 / D) ** 0.5),
            "w3": _w((lambda *s: torch.randn(*s, dtype=torch.bfloat16) * 0.2)(D, F) * (2.0 / D) ** 0.5),
            "w2": _w((lambda *s: torch.randn(*s, dtype=torch.bfloat16) * 0.2)(F, D) * (2.0 / F) ** 0.5),
        }
    _B_in = _B_setup()

    return {
        "A_x": _A_in["x"],
        "A_Lambda_re": _A_in["Lambda_re"],
        "A_Lambda_im": _A_in["Lambda_im"],
        "A_B_re": _A_in["B_re"],
        "A_B_im": _A_in["B_im"],
        "A_C_re": _A_in["C_re"],
        "A_C_im": _A_in["C_im"],
        "A_log_dt": _A_in["log_dt"],
        "A_Dskip": _A_in["Dskip"],
        "B_x": _B_in["x"],
        "B_w1": _B_in["w1"],
        "B_w3": _B_in["w3"],
        "B_w2": _B_in["w2"],
    }

def reference(A_x, A_Lambda_re, A_Lambda_im, A_B_re, A_B_im, A_C_re, A_C_im, A_log_dt, A_Dskip, B_x, B_w1, B_w3, B_w2):
    def _A_ref(x, Lambda_re, Lambda_im, B_re, B_im, C_re, C_im, log_dt, Dskip):
        Bsz, L, H = x.shape
        Lam = Lambda_re + 1j * Lambda_im
        Bmat = B_re + 1j * B_im
        Cmat = C_re + 1j * C_im
        dt = torch.exp(log_dt)
        Lam_bar = torch.exp(dt * Lam)
        B_bar = ((Lam_bar - 1.0) / Lam)[:, None] * Bmat
        Bu = torch.einsum("bld,pd->blp", x + 0j, B_bar)
        h = torch.zeros_like(Bu[:, 0, :])
        hs = []
        for t in range(L):
            h = Lam_bar[None, :] * h + Bu[:, t, :]
            hs.append(h)
        hseq = torch.stack(hs, 1)
        y = 2.0 * torch.einsum("blp,dp->bld", hseq, Cmat).real + x * Dskip[None, None, :]
        return y

    def _B_ref(x, w1, w3, w2):
        gate = torch.einsum("bsd,df->bsf", x, w1)
        up = torch.einsum("bsd,df->bsf", x, w3)
        h = _silu(gate) * up
        out = torch.einsum("bsf,fd->bsd", h, w2)
        return out

    x = A_x
    xn = _layernorm(x, axis=-1)
    s = _A_ref(xn, A_Lambda_re, A_Lambda_im, A_B_re, A_B_im, A_C_re, A_C_im, A_log_dt, A_Dskip)
    g = _silu(_B_ref(xn, B_w1, B_w3, B_w2))
    return x + s * g
```

```python
import re

TRANS = ("v_exp_f32", "v_log_f32", "v_rcp_f32", "v_rsq_f32", "v_sqrt_f32", "v_sin_f32", "v_cos_f32")
_REG = re.compile(r"^-?\|?(v|s|a)(\d+)\|?$|^-?\|?(v|s|a)\[(\d+):(\d+)\]\|?$")


def regs_of(op):
    op = op.strip()
    if op.startswith("abs(") or op.startswith("neg("):
        op = op[4:-1]
    if op in ("vcc", "vcc_lo", "vcc_hi"):
        return ("s", {"vcc"})
    if op in ("exec", "exec_lo", "exec_hi"):
        return ("s", {"exec"})
    if op == "m0":
        return ("s", {"m0"})
    m = _REG.match(op)
    if not m:
        return None
    if m.group(1):
        return (m.group(1), {int(m.group(2))})
    return (m.group(3), set(range(int(m.group(4)), int(m.group(5)) + 1)))


class Ins:
    __slots__ = ("text", "mn", "cls", "vd", "vs", "sd", "ss", "opt", "a", "b", "c", "wide", "dpp", "ws", "data")

    def __init__(self, text, opt):
        self.text = text
        self.opt = opt
        t = text.split(";")[0].strip()
        parts = t.split(None, 1)
        mn = parts[0]
        self.mn = mn
        rest = parts[1] if len(parts) > 1 else ""
        ops, depth, cur = [], 0, ""
        for ch in rest:
            if ch in "[(":
                depth += 1
            if ch in "])":
                depth -= 1
            if ch == "," and depth == 0:
                ops.append(cur.strip())
                cur = ""
            else:
                cur += ch
        if cur.strip():
            ops.append(cur.strip())
        mods = ""
        if ops:
            sp = ops[-1].split(None, 1)
            ops[-1] = sp[0]
            mods = sp[1] if len(sp) > 1 else ""
        self.vd, self.vs, self.sd, self.ss = set(), set(), set(), set()
        self.a = self.b = self.c = set()
        self.wide = False
        self.data = set()
        self.dpp = "_dpp" in mn or "quad_perm" in mods or "row_" in mods
        self.ws = 1

        def src(o):
            r = regs_of(o)
            if r is None:
                return set()
            (self.vs if r[0] == "v" else self.ss).update(r[1])
            return r[1] if r[0] == "v" else set()

        def dst(o):
            r = regs_of(o)
            if r is None:
                return
            (self.vd if r[0] == "v" else self.sd).update(r[1])

        if mn.startswith("v_mfma"):
            self.cls = "mfma"
            dst(ops[0])
            self.a = src(ops[1])
            self.b = src(ops[2])
            self.c = src(ops[3])
        elif mn.startswith("v_"):
            base = mn.replace("_e32", "").replace("_e64", "").replace("_dpp", "")
            self.cls = "trans" if base in TRANS else "valu"
            if "permlane" in mn and "swap" in mn:
                self.cls = "perm"
                for o in ops[:2]:
                    dst(o)
                    src(o)
            else:
                dst(ops[0])
                k = 1
                if base in ("v_add_co_u32", "v_sub_co_u32", "v_addc_co_u32", "v_subrev_co_u32"):
                    dst(ops[1])
                    k = 2
                for o in ops[k:]:
                    src(o)
                if base in ("v_fmac_f32", "v_pk_fmac_f16", "v_dot2c_f32_bf16") or self.dpp:
                    src(ops[0])
                if base == "v_cndmask_b32" and len(ops) == 3:
                    self.ss.add("vcc")
                if base in ("v_readlane_b32", "v_readfirstlane_b32"):
                    self.cls = "rdlane"
        elif mn.startswith("buffer_") or mn.startswith("global_"):
            self.cls = "vmem"
            if mn in ("buffer_inv", "buffer_wbl2"):
                pass
            elif " lds" in (" " + mods) or mn.startswith("global_load_lds"):
                for o in ops:
                    src(o)
                self.ss.add("m0")
                self.cls = "dma"
            elif "load" in mn:
                dst(ops[0])
                for o in ops[1:]:
                    src(o)
            else:
                if mn.startswith("buffer_"):
                    self.data = src(ops[0])
                    for o in ops[1:]:
                        src(o)
                else:
                    src(ops[0])
                    self.data = src(ops[1])
                    for o in ops[2:]:
                        src(o)
                self.wide = mn.endswith("x4") or mn.endswith("x3")
                if "atomic" in mn and "sc0" in mods:
                    dst(ops[0])
        elif mn.startswith("ds_"):
            self.cls = "ds"
            if "read" in mn or "permute" in mn or "swizzle" in mn:
                dst(ops[0])
                for o in ops[1:]:
                    src(o)
            else:
                for o in ops:
                    src(o)
        elif mn.startswith("s_"):
            self.cls = "salu"
            if mn == "s_nop":
                self.ws = int(ops[0], 0) + 1
            elif mn.startswith("s_cmp") or mn.startswith("s_bitcmp") or mn.startswith("s_cbranch") or mn in (
                    "s_waitcnt", "s_barrier", "s_branch", "s_endpgm", "s_setprio", "s_sleep"):
                for o in ops:
                    src(o)
            else:
                if ops:
                    dst(ops[0])
                for o in ops[1:]:
                    src(o)
                if "saveexec" in mn:
                    self.sd.add("exec")
        else:
            raise ValueError("unknown instruction " + text)


VALU_LIKE = ("valu", "trans", "perm", "rdlane")


def need(p, c):
    n = 0
    if p.cls in VALU_LIKE:
        if c.cls == "mfma" and p.vd & c.vs:
            n = max(n, 2)
        if p.cls == "trans" and p.vd & c.vs:
            n = max(n, 1)
        if c.cls in VALU_LIKE and p.vd & c.vs:
            if c.dpp or c.cls == "perm":
                n = max(n, 2)
            if c.cls == "rdlane":
                n = max(n, 1)
        if p.sd:
            if c.cls in VALU_LIKE + ("mfma",) and p.sd & c.ss:
                n = max(n, 4 if c.cls == "rdlane" else 2)
            if c.cls in ("vmem", "dma") and p.sd & c.ss:
                n = max(n, 5)
            if c.cls == "salu" and p.sd & c.ss:
                n = max(n, 1)
    if p.cls == "mfma":
        if c.cls == "mfma":
            if p.vd & (c.a | c.b):
                n = max(n, 8)
            if p.vd & c.c and p.vd != c.c:
                n = max(n, 6)
            if p.vd & c.vd and p.vd != c.c:
                n = max(n, 8)
        elif c.cls in VALU_LIKE + ("vmem", "dma", "ds"):
            if p.vd & (c.vs | c.vd):
                n = max(n, 8)
            if p.c & c.vd:
                n = max(n, 3)
    if p.cls == "salu" and "m0" in p.sd and c.cls == "dma":
        n = max(n, 1)
    if p.cls == "vmem" and p.wide and p.data & c.vd:
        n = max(n, 2 if c.cls in VALU_LIKE + ("mfma",) else 1)
    if p.cls == "ds" and not p.vd and c.cls in VALU_LIKE and (p.mn.endswith("b128") or p.mn.endswith("b96")) and p.vs & c.vd:
        n = max(n, 1)
    return n


class Prog:
    def __init__(self):
        self.items = []
        self.opt = None
        self.nopt = 0
        self.vm = []
        self.nlabel = 0

    def __call__(self, text):
        for line in text.split("\n"):
            line = line.strip()
            if not line:
                continue
            if line.startswith(";") or line.endswith(":") or line.startswith("."):
                self.items.append(line)
            else:
                self.items.append(Ins(line, self.opt))

    def raw(self, text):
        self.items.append(text)

    def label(self, base="L"):
        self.nlabel += 1
        return f"{base}_{self.nlabel}"

    class _Opt:
        def __init__(self, p, branch):
            self.p, self.branch = p, branch

        def __enter__(self):
            p = self.p
            assert p.opt is None
            self.lab = p.label("Lskip")
            p(f"{self.branch} {self.lab}")
            p.nopt += 1
            p.opt = p.nopt

        def __exit__(self, *a):
            self.p.opt = None
            self.p(f"{self.lab}:")

    def skip_if(self, branch):
        return Prog._Opt(self, branch)

    def vmop(self, text, tag):
        self(text)
        self.vm.append(tag)

    def vm_n(self, tag):
        if tag not in self.vm:
            return None
        idx = len(self.vm) - 1 - self.vm[::-1].index(tag)
        return len(self.vm) - 1 - idx

    def wait(self, vm=None, lgkm=None):
        parts = []
        if vm is not None:
            if isinstance(vm, int):
                n = vm
            else:
                n = self.vm_n(vm)
            if n is not None:
                assert n <= 63
                parts.append(f"vmcnt({n})")
                self.vm = self.vm[len(self.vm) - n:] if n else []
        if lgkm is not None:
            parts.append(f"lgkmcnt({lgkm})")
        if parts:
            self("s_waitcnt " + " ".join(parts))

    def fence(self):
        self("s_nop 7")
        self("s_nop 1")

    def finalize(self):
        out = []
        hist = []
        for it in self.items:
            if isinstance(it, str):
                out.append(it)
                continue
            c = it
            req = 0
            dist = 0
            inner = 0
            cur_foreign = None
            for p in reversed(hist[-40:]):
                foreign = p.opt is not None and p.opt != c.opt
                if foreign:
                    if cur_foreign != p.opt:
                        cur_foreign = p.opt
                        inner = 0
                    d = dist + inner
                    inner += p.ws
                else:
                    cur_foreign = None
                    d = dist
                    dist += p.ws
                n = need(p, c)
                if n > d:
                    req = max(req, n - d)
                if dist > 12:
                    break
            if req:
                nop = Ins(f"s_nop {req - 1}", c.opt)
                hist.append(nop)
                out.append("    " + nop.text)
            hist.append(c)
            out.append("    " + c.text)
        return "\n".join(out) + "\n"


def kernel_desc(name, nv=256, ns=102):
    return f""".p2align 6
.amdhsa_kernel {name}
  .amdhsa_next_free_vgpr {nv}
  .amdhsa_next_free_sgpr {ns}
  .amdhsa_accum_offset {(nv + 3) // 4 * 4}
  .amdhsa_group_segment_fixed_size 0
  .amdhsa_kernarg_size 128
  .amdhsa_user_sgpr_count 2
  .amdhsa_user_sgpr_kernarg_segment_ptr 1
  .amdhsa_system_sgpr_workgroup_id_x 1
.end_amdhsa_kernel
"""
```

```python
from gen import *

SLOT2 = 26624
NS2 = 6


def k2_loop(p, role):
    O = role == "o"
    NST = 27 if O else 20
    ACC = 16
    FS = 56
    LA = 112
    VW = 130

    def acc(dt, j):
        return ACC + (dt * 2 + j) * 4

    def tf(s, j):
        return FS + s * 28 + j * 4

    def wf(s, dt):
        return FS + s * 28 + 8 + dt * 4

    def reads(st):
        s = st & 1
        slot = st % NS2
        la = LA + (slot >> 1) * 6
        o = (slot & 1) * SLOT2
        r = []
        if O:
            for j in range(2):
                r.append([f"ds_read_b128 {v4(tf(s,j))}, v{la+j} offset:{o}"])
            for dt in range(5):
                for h in range(2):
                    r.append([f"ds_read_b64_tr_b16 {v2(wf(s,dt)+2*h)}, v{la+4} offset:{o + dt*1024 + h*512}"])
        else:
            for j in range(2):
                for h in range(2):
                    r.append([f"ds_read_b64_tr_b16 {v2(tf(s,j)+2*h)}, v{la+2*j+h} offset:{o}"])
            for dt in range(5):
                r.append([f"ds_read_b128 {v4(wf(s,dt))}, v{la+4} offset:{o + dt*2048}"])
        return r

    def dma(st):
        slot = st % NS2
        tag = f"d{st}"
        base = slot * SLOT2
        u = []
        if O:
            wsrd = "s[8:11]"
            u.append([f"s_add_u32 s44, s46, {st*2048}", f"s_add_u32 s45, s47, {st*10240}"])
        else:
            wsrd = "s[16:19]" if st < 10 else "s[20:23]"
            u.append([f"s_add_u32 s44, s46, {st*1024}", f"s_add_u32 s48, s46, {st*1024 + 20480 - 1024}", f"s_mov_b32 s45, {(st % 10)*128}"])

        def extra():
            p("s_cmp_ge_u32 s32, 2")
            with p.skip_if("s_cbranch_scc1"):
                p(f"s_add_u32 m0, s41, {base + 8192}")
                p(f"buffer_load_dwordx4 v{VW+1}, {wsrd}, s45 offen lds")
        u.append([extra, f"s_add_u32 m0, s40, {base}"])
        u.append([lambda: p.vmop(f"buffer_load_dwordx4 v5, s[8:11], s44 offen sc1 lds", tag)])
        u.append([lambda: p.vmop(f"buffer_load_dwordx4 v5, s[8:11], {'s44' if O else 's48'} offen offset:1024 sc1 lds", tag),
                  f"s_add_u32 m0, s41, {base}"])
        u.append([lambda: p.vmop(f"buffer_load_dwordx4 v{VW}, {wsrd}, s45 offen lds", tag)])
        return u

    def mfmas(st):
        s = st & 1
        out = []
        for dt in range(5):
            for j in range(2):
                c = "0" if st == 0 else v4(acc(dt, j))
                out.append(f"v_mfma_f32_16x16x32_bf16 {v4(acc(dt,j))}, {v4(wf(s,dt))}, {v4(tf(s,j))}, {c}")
        return out

    def emit(units):
        for u in units:
            for x in u:
                x() if callable(x) else p(x)

    def run():
        p.wait(vm="d0")
        p("s_barrier")
        emit(reads(0))
        for st in range(NST):
            fill = []
            if st + 1 < NST:
                p.wait(vm=f"d{st+1}", lgkm=0)
                p("s_barrier")
                if st + NS2 < NST:
                    fill += dma(st + NS2)
                fill += reads(st + 1)
            else:
                p.wait(lgkm=0)
            f2 = [fill[i] + (fill[i + 1] if i + 1 < len(fill) else []) for i in range(0, len(fill), 2)]
            interleave(p, mfmas(st), f2)

    def exchange():
        ex = 0 if O else 2 * SLOT2
        p("s_mul_i32 s55, s32, 5120")
        p(f"s_add_u32 s55, s55, {ex}")
        p("v_add_u32 v7, s55, v5")
        p("s_xor_b32 s55, s32, 4")
        p("s_mul_i32 s55, s55, 5120")
        p(f"s_add_u32 s55, s55, {ex}")
        p("v_add_u32 v8, s55, v5")
        for dt in range(5):
            p(f"ds_write_b128 v7, {v4(acc(dt,1))} offset:{dt*1024}")
        p.wait(lgkm=0)
        p("s_barrier")
        for dt in range(5):
            p(f"ds_read_b128 {v4(FS+4*dt)}, v8 offset:{dt*1024}")
        p.wait(lgkm=0)
        for dt in range(5):
            for h in range(2):
                p(f"v_pk_add_f32 {v2(acc(dt,0)+2*h)}, {v2(acc(dt,0)+2*h)}, {v2(FS+4*dt+2*h)}")

    return dict(NST=NST, acc=acc, dma=dma, emit=emit, run=run, exchange=exchange, LA=LA, VW=VW, FS=FS)


def set_addr(p, LA, k, src):
    for ps in range(3):
        p(f"v_add_u32 v{LA+ps*6+k}, {ps*2*SLOT2}, v{src}")


XR = 140
DR = 150
ST = 160


def k2_epi_loads(p, with_d):
    p("s_lshl_b32 s50, s35, 3")
    p("s_lshl_b32 s51, s33, 1")
    p("s_add_u32 s50, s50, s51")
    p("s_add_u32 s50, s50, s34")
    p("s_mul_i32 s51, s50, 20480")
    p("s_mul_i32 s52, s36, 160")
    p("s_add_u32 s51, s51, s52")
    p("v_mul_u32_u24 v9, 1280, v3")
    p("v_lshl_add_u32 v9, v4, 3, v9")
    for dt in range(5):
        p.vmop(f"buffer_load_dwordx2 {v2(XR+2*dt)}, v9, s[4:7], s51 offen offset:{dt*32}", "ep")
    if with_d:
        srd(p, 28, KA["dsk"], 1280)
        p("v_lshlrev_b32 v10, 3, v4")
        for dt in range(5):
            p.vmop(f"buffer_load_dwordx2 {v2(DR+2*dt)}, v10, s[28:31], s52 offen offset:{dt*32}", "ep")
        p("v_and_b32 v11, 6, v3")
        p("v_lshlrev_b32 v11, 1, v11")
        p("v_and_b32 v12, 1, v3")
        p("v_lshl_add_u32 v11, v12, 1, v11")
        p("v_lshrrev_b32 v12, 3, v3")
        p("v_add_lshl_u32 v11, v11, v12, 2")
        p("s_lshl_b32 s53, s50, 6")
        p.vmop(f"buffer_load_dword v{ST}, v11, s[8:11], s53 offen offset:{WS_M} sc1", "ep")
        p(f"s_add_u32 s53, s53, {WS_R}")
        p.vmop(f"buffer_load_dword v{ST+1}, v11, s[8:11], s53 offen sc1", "ep")
    p("s_lshl_b32 s54, s35, 3")
    p("s_add_u32 s54, s54, s36")
    p("s_lshl_b32 s54, s54, 3")
    p("s_add_u32 s54, s54, s32")
    p("s_mul_i32 s56, s54, 5120")
    p(f"s_add_u32 s56, s56, {WS_S}")
    p("s_lshl_b32 s57, s54, 2")
    p(f"s_add_u32 s57, s57, {WS_FLAG}")


def unpack4(p, d, s):
    p(f"v_lshlrev_b32 v{d}, 16, v{s}")
    p(f"v_and_b32 v{d+1}, 0xffff0000, v{s}")
    p(f"v_lshlrev_b32 v{d+2}, 16, v{s+1}")
    p(f"v_and_b32 v{d+3}, 0xffff0000, v{s+1}")


def gen_k2(p):
    p.vm = []
    p(".globl k2_kernel")
    p(".p2align 8")
    p(".type k2_kernel,@function")
    p("k2_kernel:")
    p("s_cmp_ge_u32 s2, 256")
    p("s_cbranch_scc1 L_k2_end")
    p("s_load_dwordx16 s[64:79], s[0:1], 0")
    p("s_load_dwordx16 s[80:95], s[0:1], 64")
    p("v_lshrrev_b32 v2, 6, v0")
    p("v_and_b32 v1, 63, v0")
    p("v_readfirstlane_b32 s32, v2")
    p("s_and_b32 s33, s32, 3")
    p("s_lshr_b32 s34, s32, 2")
    p("s_and_b32 s38, s2, 7")
    p("s_lshr_b32 s39, s2, 3")
    p("s_and_b32 s35, s38, 3")
    p("s_lshl_b32 s35, s35, 2")
    p("s_and_b32 s46, s39, 3")
    p("s_add_u32 s35, s35, s46")
    p("s_lshr_b32 s36, s39, 2")
    p("v_and_b32 v3, 15, v1")
    p("v_lshrrev_b32 v4, 4, v1")
    p("v_lshlrev_b32 v5, 4, v1")
    p("s_lshl_b32 s40, s32, 11")
    p("s_lshl_b32 s41, s32, 10")
    p("s_add_u32 s41, s41, 16384")
    p("s_waitcnt lgkmcnt(0)")
    srd(p, 4, KA["x"], 2621440)
    srd(p, 8, KA["ws"], WS_SIZE)
    srd(p, 12, KA["out"], 5242880)
    p("s_cmp_ge_u32 s38, 4")
    p("s_cbranch_scc1 L_k2_y")
    L = k2_loop(p, "o")
    LA, VW, acc, FS = L["LA"], L["VW"], L["acc"], L["FS"]
    p("s_lshl_b32 s46, s35, 3")
    p("s_add_u32 s46, s46, s32")
    p(f"s_mul_i32 s46, s46, {54*1024}")
    p(f"s_add_u32 s46, s46, {WS_HH}")
    p(f"s_mul_i32 s47, s36, {270*1024}")
    p(f"s_add_u32 s47, s47, {WS_W2T}")
    p("s_lshl_b32 s55, s32, 10")
    p(f"v_add_u32 v{VW}, s55, v5")
    p(f"v_add_u32 v{VW+1}, 8192, v{VW}")
    for st in range(NS2):
        L["emit"](L["dma"](st))
    for j in range(2):
        p(f"s_xor_b32 s55, s34, {j}")
        p("s_lshl_b32 s58, s33, 1")
        p("s_add_u32 s55, s55, s58")
        p("s_lshl_b32 s55, s55, 1")
        p("s_add_u32 s55, s55, s34")
        p("s_lshl_b32 s55, s55, 10")
        p("v_add_u32 v7, s55, v5")
        set_addr(p, LA, j, 7)
    p("s_mul_i32 s55, s34, 5120")
    p("s_add_u32 s55, s55, 16384")
    p("v_lshlrev_b32 v7, 3, v1")
    p("v_add_u32 v7, s55, v7")
    set_addr(p, LA, 4, 7)
    k2_epi_loads(p, False)
    L["run"]()
    L["exchange"]()
    T = FS + 20
    for dt in range(5):
        a = acc(dt, 0)
        for r in range(4):
            p(f"v_mul_f32 v{T+r}, 0xbfb8aa3b, v{a+r}")
        for r in range(4):
            p(f"v_exp_f32 v{T+r}, v{T+r}")
        for r in range(4):
            p(f"v_add_f32 v{T+r}, 1.0, v{T+r}")
        for r in range(4):
            p(f"v_rcp_f32 v{T+r}, v{T+r}")
        for h in range(2):
            p(f"v_pk_mul_f32 {v2(a+2*h)}, {v2(a+2*h)}, {v2(T+2*h)}")
    lab = p.label("Lfl")
    done = p.label("Lfld")
    p("s_mov_b32 s60, 0")
    p(f"{lab}:")
    p("buffer_load_dword v7, off, s[8:11], s57 sc1")
    p("s_waitcnt vmcnt(0)")
    p("v_readfirstlane_b32 s61, v7")
    p("s_nop 1")
    p("s_cmp_eq_u32 s61, 1")
    p(f"s_cbranch_scc1 {done}")
    p("s_sleep 1")
    p("s_add_u32 s60, s60, 1")
    p(f"s_cmp_lt_u32 s60, {SPIN_MAX}")
    p(f"s_cbranch_scc1 {lab}")
    p(f"{done}:")
    p.vm = []
    for dt in range(4):
        p.vmop(f"buffer_load_dwordx4 {v4(FS+4*dt)}, v5, s[8:11], s56 offen offset:{dt*1024} sc1", f"s{dt}")
    p("s_add_u32 s56, s56, 4096")
    p.vmop(f"buffer_load_dwordx4 {v4(FS+16)}, v5, s[8:11], s56 offen sc1", "s4")
    p("s_mul_i32 s51, s50, 40960")
    p("s_mul_i32 s52, s36, 320")
    p("s_add_u32 s51, s51, s52")
    p("v_mul_u32_u24 v9, 2560, v3")
    p("v_lshl_add_u32 v9, v4, 4, v9")
    for dt in range(5):
        a = acc(dt, 0)
        x4 = acc(dt, 1)
        unpack4(p, x4, XR + 2 * dt)
        p.wait(vm=f"s{dt}")
        for h in range(2):
            p(f"v_pk_fma_f32 {v2(a+2*h)}, {v2(a+2*h)}, {v2(FS+4*dt+2*h)}, {v2(x4+2*h)}")
        p.vmop(f"buffer_store_dwordx4 {v4(a)}, v9, s[12:15], s51 offen offset:{dt*64}", "o")
    p("s_branch L_k2_end")
    p("L_k2_y:")
    p.fence()
    p.vm = []
    L = k2_loop(p, "y")
    srd(p, 16, KA["cre"], 640 * 1280)
    srd(p, 20, KA["cim"], 640 * 1280)
    p("s_lshl_b32 s46, s35, 4")
    p("s_lshl_b32 s55, s32, 1")
    p("s_add_u32 s46, s46, s55")
    p("s_mul_i32 s46, s46, 20480")
    p(f"s_add_u32 s46, s46, {WS_H}")
    p("v_lshrrev_b32 v7, 3, v1")
    p("v_and_b32 v8, 7, v1")
    p("s_mul_i32 s55, s36, 80")
    p("s_lshl_b32 s58, s32, 3")
    for i in range(2):
        p(f"v_add_u32 v9, {64*i}, v7")
        p("v_add_u32 v9, s58, v9")
        p("v_bfe_u32 v10, v9, 1, 3")
        p("v_xor_b32 v10, v10, v8")
        p("v_add_u32 v9, s55, v9")
        p("v_mul_u32_u24 v9, 1280, v9")
        p(f"v_lshl_add_u32 v{VW+i}, v10, 4, v9")
    for st in range(NS2):
        L["emit"](L["dma"](st))
    p("v_bfe_u32 v7, v1, 1, 1")
    p("v_bfe_u32 v8, v1, 2, 2")
    p("v_lshl_add_u32 v8, v4, 3, v8")
    p("s_lshl_b32 s55, s34, 5")
    p("v_add_u32 v8, s55, v8")
    p("v_lshlrev_b32 v9, 2, v7")
    p("v_xor_b32 v8, v8, v9")
    p("v_lshlrev_b32 v8, 4, v8")
    p("v_lshl_add_u32 v8, v7, 10, v8")
    p("v_and_b32 v9, 1, v1")
    p("v_lshl_add_u32 v8, v9, 3, v8")
    for j in range(2):
        p(f"s_xor_b32 s55, s34, {j}")
        p("s_lshl_b32 s58, s33, 1")
        p("s_add_u32 s55, s55, s58")
        p("s_lshl_b32 s55, s55, 11")
        p("v_add_u32 v9, s55, v8")
        p("v_xor_b32 v10, 64, v9")
        set_addr(p, LA, 2 * j, 9)
        set_addr(p, LA, 2 * j + 1, 10)
    p("s_lshl_b32 s55, s34, 2")
    p("v_add_u32 v7, s55, v4")
    p("v_lshrrev_b32 v8, 1, v3")
    p("v_xor_b32 v7, v7, v8")
    p("v_lshlrev_b32 v7, 4, v7")
    p("v_lshl_add_u32 v7, v3, 7, v7")
    p("v_add_u32 v7, 16384, v7")
    set_addr(p, LA, 4, 7)
    k2_epi_loads(p, True)
    L["run"]()
    L["exchange"]()
    for dt in range(5):
        a = acc(dt, 0)
        x4 = acc(dt, 1)
        d4 = FS + 20
        unpack4(p, x4, XR + 2 * dt)
        unpack4(p, d4, DR + 2 * dt)
        for h in range(2):
            p(f"v_pk_add_f32 {v2(x4+2*h)}, {v2(x4+2*h)}, {v2(ST)} op_sel_hi:[1,0] neg_lo:[0,1] neg_hi:[0,1]")
            p(f"v_pk_mul_f32 {v2(x4+2*h)}, {v2(x4+2*h)}, {v2(ST)} op_sel:[0,1] op_sel_hi:[1,1]")
            p(f"v_pk_fma_f32 {v2(a+2*h)}, {v2(x4+2*h)}, {v2(d4+2*h)}, {v2(a+2*h)}")
        if dt == 4:
            p("s_add_u32 s56, s56, 4096")
        p(f"buffer_store_dwordx4 {v4(a)}, v5, s[8:11], s56 offen offset:{(dt%4)*1024} sc1")
    p("v_mov_b32 v7, 1")
    p("s_waitcnt vmcnt(0)")
    p("s_mov_b64 exec, 1")
    p("buffer_store_dword v7, off, s[8:11], s57 sc1")
    p("L_k2_end:")
    p("s_endpgm")
```

```python
import sys
from asmlib import Prog, kernel_desc

WS_M = 0
WS_R = 8192
WS_AGG = 0x10000
WS_FLAG = 0x20000
WS_W2T = 0x100000
WS_HH = 0x400000
WS_H = 0xC00000
WS_S = 0x1200000
WS_SIZE = 0x1800000

SLOT = 53248
MISC = 3 * SLOT
LOG2E = 0x3fb8aa3b
INV2PI = 0x3e22f983
SPIN_MAX = 200000

KA = dict(x=64, lre=66, lim=68, bre=70, bim=72, cre=74, cim=76, ldt=78, dsk=80, bx=82, w1=84, w3=86, w2=88, out=90, dbg=92, ws=94)


def v4(b):
    return f"v[{b}:{b+3}]"


def v2(b):
    return f"v[{b}:{b+1}]"


def srd(p, s, ptr, nbytes):
    p(f"s_mov_b32 s{s}, s{ptr}")
    p(f"s_mov_b32 s{s+1}, s{ptr+1}")
    p(f"s_mov_b32 s{s+2}, {nbytes}")
    p(f"s_mov_b32 s{s+3}, 0x20000")


def interleave(p, mf, fill, start=0):
    fill = list(fill)
    for i, m in enumerate(mf):
        p(m)
        if i >= start and fill:
            u = fill.pop(0)
            for x in u:
                x() if callable(x) else p(x)
    for u in fill:
        for x in u:
            x() if callable(x) else p(x)


def wave_sum(p, v, t, sdst):
    p(f"v_add_f32_dpp v{v}, v{v}, v{v} quad_perm:[1,0,3,2] row_mask:0xf bank_mask:0xf")
    p(f"v_add_f32_dpp v{v}, v{v}, v{v} quad_perm:[2,3,0,1] row_mask:0xf bank_mask:0xf")
    p(f"v_add_f32_dpp v{v}, v{v}, v{v} row_half_mirror row_mask:0xf bank_mask:0xf")
    p(f"v_add_f32_dpp v{v}, v{v}, v{v} row_mirror row_mask:0xf bank_mask:0xf")
    p(f"v_add_f32_dpp v{v}, v{v}, v{v} row_bcast:15 row_mask:0xa bank_mask:0xf")
    p(f"v_add_f32_dpp v{v}, v{v}, v{v} row_bcast:31 row_mask:0xc bank_mask:0xf")
    p(f"v_readlane_b32 s{sdst}, v{v}, 63")


def rne_bf16(p, v):
    p(f"v_cvt_pk_bf16_f32 v{v}, v{v}, v{v}")
    p(f"v_and_b32 v{v}, 0xffff0000, v{v}")


def cmac(p, d, a, m, c):
    if c is None:
        p(f"v_pk_mul_f32 {v2(d)}, {v2(a)}, {v2(m)} op_sel_hi:[1,0]")
    else:
        p(f"v_pk_fma_f32 {v2(d)}, {v2(a)}, {v2(m)}, {v2(c)} op_sel_hi:[1,0,1]")
    p(f"v_pk_fma_f32 {v2(d)}, {v2(a)}, {v2(m)}, {v2(d)} op_sel:[1,1,0] op_sel_hi:[0,1,1] neg_lo:[0,1,0]")


def poll_phase0(p, vt, vaddr):
    lab = p.label("Lp0")
    done = p.label("Lp0d")
    p("s_mov_b32 s60, 0")
    p(f"{lab}:")
    p(f"buffer_load_dword v{vt}, v{vaddr}, s[12:15], 0 offen sc1")
    p("s_waitcnt vmcnt(0)")
    p.vm = []
    p(f"v_cmp_ne_u32 vcc, 0x01010101, v{vt}")
    p("s_nop 1")
    p("s_cmp_eq_u64 vcc, 0")
    p(f"s_cbranch_scc1 {done}")
    p("s_sleep 2")
    p("s_add_u32 s60, s60, 1")
    p(f"s_cmp_lt_u32 s60, {SPIN_MAX}")
    p(f"s_cbranch_scc1 {lab}")
    p(f"{done}:")


def k1_common_prologue(p):
    p("s_cmp_ge_u32 s2, 256")
    p("s_cbranch_scc1 L_k1_end")
    p("s_load_dwordx16 s[64:79], s[0:1], 0")
    p("s_load_dwordx16 s[80:95], s[0:1], 64")
    p("v_lshrrev_b32 v2, 6, v0")
    p("v_and_b32 v1, 63, v0")
    p("v_readfirstlane_b32 s32, v2")
    p("s_and_b32 s33, s32, 3")
    p("s_lshr_b32 s34, s32, 2")
    p("s_and_b32 s38, s2, 7")
    p("s_lshr_b32 s39, s2, 3")
    p("s_and_b32 s35, s38, 1")
    p("s_lshl_b32 s35, s35, 2")
    p("s_and_b32 s46, s39, 3")
    p("s_add_u32 s35, s35, s46")
    p("s_lshr_b32 s46, s38, 1")
    p("s_lshr_b32 s47, s39, 2")
    p("s_lshl_b32 s37, s46, 3")
    p("s_add_u32 s37, s37, s47")
    p("s_mul_i32 s48, s46, 3")
    p("s_lshl_b32 s49, s46, 1")
    p("s_add_u32 s49, s49, 2")
    p("s_mul_i32 s50, s46, 5")
    p("s_mul_i32 s51, s46, 6")
    p("s_sub_u32 s51, s51, 2")
    p("s_cmp_lt_u32 s46, 2")
    p("s_cselect_b32 s48, s48, s49")
    p("s_cselect_b32 s50, s50, s51")
    p("s_cselect_b32 s52, 3, 2")
    p("s_add_u32 s48, s48, s47")
    p("s_add_u32 s50, s50, s47")
    p("s_sub_u32 s50, s50, s52")
    p("v_and_b32 v3, 15, v1")
    p("v_lshrrev_b32 v4, 4, v1")
    p("s_lshl_b32 s40, s32, 12")
    p("s_waitcnt lgkmcnt(0)")
    srd(p, 4, KA["x"], 2621440)
    srd(p, 8, KA["ws"], WS_SIZE)
    srd(p, 12, KA["dbg"], 256)
    p("s_lshl_b32 s53, s35, 8")
    p("s_lshl_b32 s54, s37, 3")
    p("s_add_u32 s53, s53, s54")
    p("s_add_u32 s53, s53, s32")
    p("s_mul_i32 s54, s53, 1280")
    p("v_lshlrev_b32 v5, 4, v1")
    p("v_lshlrev_b32 v6, 2, v1")
    p.vmop(f"buffer_load_dwordx4 v[212:215], v5, s[4:7], s54 offen", "st")
    p.vmop(f"buffer_load_dword v216, v6, s[4:7], s54 offen offset:1024", "st")
    p("s_cmp_lt_u32 s47, s52")
    p("s_cbranch_scc1 L_k1_ssm")


def k1_stats(p):
    p.wait(vm="st")
    for i in range(5):
        p(f"v_lshlrev_b32 v{220+2*i}, 16, v{212+i}")
        p(f"v_and_b32 v{221+2*i}, 0xffff0000, v{212+i}")
    p("v_add_f32 v230, v220, v221")
    for i in range(2, 10):
        p(f"v_add_f32 v230, v230, v{220+i}")
    wave_sum(p, 230, 231, 55)
    p("v_mov_b32 v231, 0x3acccccd")
    p("v_mul_f32 v231, s55, v231")
    for i in range(10):
        p(f"v_sub_f32 v{220+i}, v{220+i}, v231")
    p("v_mul_f32 v230, v220, v220")
    for i in range(1, 10):
        p(f"v_fmac_f32 v230, v{220+i}, v{220+i}")
    wave_sum(p, 230, 232, 55)
    p("v_mov_b32 v232, 0x3acccccd")
    p("v_mul_f32 v232, s55, v232")
    rne_bf16(p, 231)
    rne_bf16(p, 232)
    p("v_add_f32 v232, 0x3727c5ac, v232")
    rne_bf16(p, 232)
    p("v_sqrt_f32 v232, v232")
    rne_bf16(p, 232)
    p("v_rcp_f32 v232, v232")
    p("s_and_b32 s55, s53, 6")
    p("s_lshl_b32 s55, s55, 1")
    p("s_and_b32 s56, s53, 1")
    p("s_lshl_b32 s56, s56, 1")
    p("s_add_u32 s55, s55, s56")
    p("s_bfe_u32 s56, s53, 0x10003")
    p("s_add_u32 s55, s55, s56")
    p("s_and_b32 s56, s53, 0xfffffff0")
    p("s_add_u32 s55, s55, s56")
    p("s_lshl_b32 s55, s55, 2")
    p("s_mov_b64 exec, 1")
    p.vmop(f"buffer_store_dword v231, off, s[8:11], s55 offset:{WS_M} sc1", "p0")
    p("s_add_u32 s55, s55, %d" % WS_R)
    p.vmop(f"buffer_store_dword v232, off, s[8:11], s55 sc1", "p0")
    p("s_and_b32 s55, s53, 1023")
    p("s_lshl_b32 s55, s55, 2")
    p(f"s_add_u32 s55, s55, {WS_FLAG}")
    p("v_mov_b32 v233, 0")
    p.vmop(f"buffer_store_dword v233, off, s[8:11], s55 sc1", "p0")
    p("s_mov_b64 exec, -1")


def k1_signal_phase0(p):
    p("s_cmp_lg_u32 s32, 0")
    with p.skip_if("s_cbranch_scc1"):
        p("s_lshl_b32 s55, s35, 5")
        p("s_add_u32 s55, s55, s37")
        p("v_mov_b32 v233, 1")
        p("s_mov_b64 exec, 1")
        p("buffer_store_byte v233, off, s[12:15], s55 sc1")
        p("s_mov_b64 exec, -1")


def k1_retile_w2(p):
    srd(p, 28, KA["w2"], 1728 * 1280)
    p("v_lshrrev_b32 v220, 5, v1")
    p("v_bfe_u32 v221, v1, 3, 2")
    p("v_bfe_u32 v222, v1, 1, 2")
    p("v_and_b32 v223, 1, v1")
    p("v_lshl_add_u32 v224, v220, 4, v222")
    p("v_lshl_add_u32 v224, v221, 2, v224")
    p("v_lshrrev_b32 v225, 1, v221")
    p("v_mul_u32_u24 v226, 80, v225")
    p("v_and_b32 v227, 1, v221")
    p("v_lshl_add_u32 v226, v227, 3, v226")
    p("v_lshl_add_u32 v226, v220, 2, v226")
    p("v_add3_u32 v226, v226, v222, 64")
    p("v_lshlrev_b32 v227, 5, v225")
    p("v_sub_u32 v227, v226, v227")
    p("v_lshlrev_b32 v223, 4, v223")
    p("s_lshl_b32 s55, s35, 5")
    p("s_add_u32 s55, s55, s37")
    p("s_lshl_b32 s55, s55, 3")
    p("s_add_u32 s55, s55, s32")
    for rep in range(2):
        def body():
            p("s_mul_i32 s56, s55, 15535")
            p("s_lshr_b32 s56, s56, 22")
            p("s_mul_i32 s57, s56, 270")
            p("s_sub_u32 s57, s55, s57")
            p("s_mul_i32 s58, s57, 13108")
            p("s_lshr_b32 s58, s58, 16")
            p("s_mul_i32 s59, s58, 5")
            p("s_sub_u32 s59, s57, s59")
            p("s_mul_i32 s56, s56, 160")
            p("s_lshl_b32 s59, s59, 5")
            p("s_add_u32 s56, s56, s59")
            p("s_mul_i32 s57, s58, 13108")
            p("s_lshr_b32 s57, s57, 16")
            p("s_mul_i32 s59, s57, 5")
            p("s_sub_u32 s59, s58, s59")
            p("s_cmp_eq_u32 s58, 53")
            p("s_cselect_b32 s59, 4, s59")
            p("s_cselect_b64 s[62:63], -1, 0")
            p("v_cndmask_b32 v228, v226, v227, s[62:63]")
            p("s_mul_i32 s57, s57, 160")
            p("s_lshr_b32 s60, s59, 1")
            p("s_mul_i32 s60, s60, 80")
            p("s_and_b32 s61, s59, 1")
            p("s_lshl_b32 s61, s61, 5")
            p("s_add_u32 s60, s60, s61")
            p("s_cmp_eq_u32 s59, 4")
            p("s_cselect_b32 s60, 0, s60")
            p("s_cselect_b64 s[62:63], -1, 0")
            p("v_cndmask_b32 v228, v224, v228, s[62:63]")
            p("s_add_u32 s57, s57, s60")
            p("s_mul_i32 s57, s57, 1280")
            p("s_add_u32 s57, s57, s56")
            p("v_mul_u32_u24 v228, 1280, v228")
            p("v_add_u32 v228, v228, v223")
            p("buffer_load_dwordx4 v[236:239], v228, s[28:31], s57 offen")
            p("s_lshl_b32 s56, s55, 10")
            p(f"s_add_u32 s56, s56, {WS_W2T}")
            p("s_waitcnt vmcnt(0)")
            p("buffer_store_dwordx4 v[236:239], v5, s[8:11], s56 offen sc1")
        if rep == 0:
            body()
        else:
            p("s_add_u32 s55, s55, 2048")
            p("s_cmp_ge_u32 s55, 2160")
            with p.skip_if("s_cbranch_scc1"):
                body()
    p.vm = []
    p.vm.append("rt")


def k1_mainloop(p, role):
    mlp = role == "mlp"
    NT = 5 if mlp else 4
    ACC = 16
    CS = ACC + NT * 16
    FS = CS + NT * 4
    FSZ = 16 + NT * 4
    ONES = 188
    VX, VW, LA = 192, 196, 200

    def xf(s, j):
        return FS + s * FSZ + j * 4

    def wf(s, t):
        return FS + s * FSZ + 16 + t * 4

    def acc(t, j):
        return ACC + (t * 4 + j) * 4 if mlp else ACC + (j * 4 + t) * 4

    def reads(st, u, s):
        slot = st % 3
        la = LA + slot * 4
        r = []
        if mlp:
            toff = [0, 32, 10240, 10272]
            def wr(t):
                out = []
                for h in range(2):
                    if t < 4:
                        out.append([f"ds_read_b64_tr_b16 {v2(wf(s,t)+2*h)}, v{la+2} offset:{u*5120+h*2560+toff[t]}"])
                    else:
                        out.append([f"ds_read_b64_tr_b16 {v2(wf(s,t)+2*h)}, v{la+3} offset:{u*5120+h*2560}"])
                return out
            r += wr(0)
            for j in range(4):
                r.append([f"ds_read_b128 {v4(xf(s,j))}, v{la+u} offset:{j*2048}"])
            for t in range(1, 5):
                r += wr(t)
        else:
            for j in range(4):
                r.append([f"ds_read_b128 {v4(xf(s,j))}, v{la+u} offset:{j*2048}"])
                r.append([f"ds_read_b128 {v4(wf(s,j))}, v{la+2+u} offset:{j*2048}"])
        return r

    def dma(st):
        slot = st % 3
        tag = f"d{st}"
        units = []
        units.append([f"s_mov_b32 s44, {st*128}", f"s_mov_b32 s45, {st*64*3456 if mlp else st*128}",
                      f"s_add_u32 m0, s40, {slot*SLOT}"])
        for i in range(4):
            u = [lambda i=i: p.vmop(f"buffer_load_dwordx4 v{VX+i}, s[4:7], s44 offen lds", tag)]
            if i < 3:
                u.append(f"s_add_u32 m0, s40, {slot*SLOT + (i+1)*1024}")
            else:
                u.append(f"s_add_u32 m0, s41, {slot*SLOT}")
            units.append(u)
        units.append([lambda: p.vmop(f"buffer_load_dwordx4 v{VW}, s[16:19], s45 offen lds", tag),
                      f"s_add_u32 m0, s42, {slot*SLOT}"])
        units.append([lambda: p.vmop(f"buffer_load_dwordx4 v{VW+1}, s[20:23], s45 offen lds", tag)])
        if mlp:
            def third():
                p("s_cmp_ge_u32 s32, 4")
                with p.skip_if("s_cbranch_scc1"):
                    p(f"s_add_u32 m0, s43, {slot*SLOT}")
                    p(f"buffer_load_dwordx4 v{VW+2}, s[24:27], s45 offen lds")
            units.insert(1, [third, f"s_add_u32 m0, s40, {slot*SLOT}"])
        return units

    def mfmas(st, u, s):
        step = 2 * st + u
        out = []
        for t in range(NT):
            for j in range(4):
                c = "0" if step == 0 else v4(acc(t, j))
                if mlp:
                    out.append(f"v_mfma_f32_16x16x32_bf16 {v4(acc(t,j))}, {v4(wf(s,t))}, {v4(xf(s,j))}, {c}")
                else:
                    out.append(f"v_mfma_f32_16x16x32_bf16 {v4(acc(t,j))}, {v4(xf(s,j))}, {v4(wf(s,t))}, {c}")
        return out

    def colsum(st, u, s):
        step = 2 * st + u
        p(f"s_cmp_lg_u32 s33, {step & 3}")
        with p.skip_if("s_cbranch_scc1"):
            for t in range(NT):
                c = "0" if step < 4 else v4(CS + 4 * t)
                if mlp:
                    p(f"v_mfma_f32_16x16x32_bf16 {v4(CS+4*t)}, {v4(wf(s,t))}, {v4(ONES)}, {c}")
                else:
                    p(f"v_mfma_f32_16x16x32_bf16 {v4(CS+4*t)}, {v4(ONES)}, {v4(wf(s,t))}, {c}")

    def emit_units(units):
        for u in units:
            for x in u:
                x() if callable(x) else p(x)

    return dict(reads=reads, dma=dma, mfmas=mfmas, colsum=colsum, emit=emit_units, acc=acc, CS=CS, FS=FS,
                ONES=ONES, VX=VX, VW=VW, LA=LA, NT=NT)


def k1_run_loop(p, L, extra=None):
    p.wait(vm="d0")
    p("s_barrier")
    L["emit"](L["reads"](0, 0, 0))
    for st in range(10):
        p.wait(lgkm=0)
        interleave(p, L["mfmas"](st, 0, 0), L["reads"](st, 1, 1))
        L["colsum"](st, 0, 0)
        if st < 9:
            p.wait(vm=f"d{st+1}", lgkm=0)
            p("s_barrier")
            if st == 2:
                k1_signal_phase0(p)
            fill = L["reads"](st + 1, 0, 0)
            if st + 3 < 10:
                fill = fill + L["dma"](st + 3)
        else:
            p.wait(lgkm=0)
            fill = []
        interleave(p, L["mfmas"](st, 1, 1), fill)
        L["colsum"](st, 1, 1)


def x_dma_offsets(p, VX, ssm):
    p("v_lshrrev_b32 v7, 3, v1")
    p("v_and_b32 v8, 7, v1")
    p("s_lshl_b32 s55, s32, 5")
    p("s_lshl_b32 s56, s35, 8")
    for i in range(4):
        p(f"v_add_u32 v9, {8*i}, v7")
        p("v_add_u32 v9, s55, v9")
        p("v_bfe_u32 v10, v9, 1, 3")
        p("v_xor_b32 v10, v10, v8")
        if ssm:
            p("v_and_b32 v11, 0xc0, v9")
            p("v_bfe_u32 v12, v9, 2, 2")
            p("v_lshl_add_u32 v11, v12, 4, v11")
            p("v_and_b32 v12, 1, v9")
            p("v_lshl_add_u32 v11, v12, 3, v11")
            p("v_bfe_u32 v12, v9, 4, 2")
            p("v_lshl_add_u32 v11, v12, 1, v11")
            p("v_bfe_u32 v12, v9, 1, 1")
            p("v_add_u32 v9, v11, v12")
        p("v_add_u32 v9, s56, v9")
        p("v_mul_u32_u24 v9, 1280, v9")
        p(f"v_lshl_add_u32 v{VX+i}, v10, 4, v9")


def x_lds_addrs(p, LA, k, base, srow):
    p(f"s_lshl_b32 s55, s{srow}, 13")
    p(f"s_add_u32 s55, s55, {base}")
    p("v_lshrrev_b32 v7, 1, v3")
    p("v_xor_b32 v7, v7, v4")
    p("v_lshlrev_b32 v7, 4, v7")
    p("v_lshl_add_u32 v7, v3, 7, v7")
    p("v_add_u32 v7, s55, v7")
    p("v_xor_b32 v8, 64, v7")
    for slot in range(3):
        p(f"v_add_u32 v{LA+slot*4+k}, {slot*SLOT}, v7")
        p(f"v_add_u32 v{LA+slot*4+k+1}, {slot*SLOT}, v8")


def k1_mlp(p):
    L = k1_mainloop(p, "mlp")
    VX, VW, LA, ONES, CS = L["VX"], L["VW"], L["LA"], L["ONES"], L["CS"]
    acc = L["acc"]
    p("s_mov_b32 s36, s50")
    p("s_mul_i32 s46, s36, 80")
    p("s_add_u32 s47, s46, 32")
    p("s_add_u32 s48, s46, 64")
    p("s_cmp_eq_u32 s36, 21")
    p("s_cselect_b32 s48, s47, s48")
    p("s_cselect_b32 s47, s46, s47")
    x_dma_offsets(p, VX, False)
    p("s_mul_i32 s49, s32, 3")
    p("s_lshl_b32 s50, s32, 1")
    p("s_add_u32 s50, s50, 4")
    p("s_cmp_lt_u32 s32, 4")
    p("s_cselect_b32 s49, s49, s50")
    for i in range(3):
        p(f"s_add_u32 s50, s49, {i}")
        p("s_lshl_b32 s51, s50, 10")
        p(f"s_add_u32 s{41+i}, s51, 32768")
        p("s_cmp_ge_u32 s50, 10")
        p(f"s_cselect_b32 s{16+4*i}, s{KA['w3']}, s{KA['w1']}")
        p(f"s_cselect_b32 s{17+4*i}, s{KA['w3']+1}, s{KA['w1']+1}")
        p("s_cselect_b32 s51, 10, 0")
        p("s_cselect_b32 s52, 1, 0")
        p(f"s_mov_b32 s{18+4*i}, {640*3456}")
        p(f"s_mov_b32 s{19+4*i}, 0x20000")
        p("s_sub_u32 s50, s50, s51")
        p("s_lshl_b32 s50, s50, 6")
        p("v_add_u32 v7, s50, v1")
        p("v_mul_u32_u24 v8, 6554, v7")
        p("v_lshrrev_b32 v8, 16, v8")
        p("v_mul_u32_u24 v9, 10, v8")
        p("v_sub_u32 v9, v7, v9")
        p("v_and_b32 v10, 35, v8")
        p("v_bfe_u32 v11, v8, 2, 2")
        p("v_lshl_add_u32 v10, v11, 3, v10")
        p("v_bfe_u32 v11, v8, 4, 1")
        p("v_lshl_add_u32 v10, v11, 2, v10")
        p("v_and_b32 v11, 3, v9")
        p("v_lshlrev_b32 v11, 3, v11")
        p("v_add_u32 v12, s46, v11")
        p("v_add_u32 v13, s47, v11")
        p("v_cmp_gt_u32 vcc, 4, v9")
        p("v_cndmask_b32 v12, v13, v12, vcc")
        p("v_and_b32 v11, 1, v9")
        p("v_xor_b32 v11, s52, v11")
        p("v_lshlrev_b32 v11, 3, v11")
        p("v_add_u32 v13, s48, v11")
        p("v_cmp_gt_u32 vcc, 8, v9")
        p("v_cndmask_b32 v12, v13, v12, vcc")
        p("v_mul_u32_u24 v10, 3456, v10")
        p(f"v_lshl_add_u32 v{VW+i}, v12, 1, v10")
    for st in range(3):
        L["emit"](L["dma"](st))
    x_lds_addrs(p, LA, 0, 0, 33)
    p("v_lshrrev_b32 v7, 5, v1")
    p("v_mul_u32_u24 v7, 1280, v7")
    p("v_bfe_u32 v8, v1, 2, 3")
    p("v_mul_u32_u24 v8, 160, v8")
    p("v_add_u32 v7, v7, v8")
    p("v_add_u32 v7, 32768, v7")
    p("v_and_b32 v8, 3, v1")
    p("s_lshl_b32 s55, s34, 6")
    p("v_lshl_add_u32 v9, v8, 3, v7")
    p("v_add_u32 v9, s55, v9")
    p("v_lshrrev_b32 v10, 1, v8")
    p("v_mul_u32_u24 v11, 10240, v10")
    p("v_xor_b32 v10, s34, v10")
    p("v_lshl_add_u32 v11, v10, 4, v11")
    p("v_and_b32 v10, 1, v8")
    p("v_lshl_add_u32 v11, v10, 3, v11")
    p("v_add3_u32 v11, v11, v7, 64")
    p("v_add_u32 v11, 64, v11")
    for slot in range(3):
        p(f"v_add_u32 v{LA+slot*4+2}, {slot*SLOT}, v9")
        p(f"v_add_u32 v{LA+slot*4+3}, {slot*SLOT}, v11")
    for i in range(4):
        p(f"v_mov_b32 v{ONES+i}, 0x3f803f80")
    k1_stats(p)
    k1_run_loop(p, L)
    p("s_lshl_b32 s55, s34, 2")
    p("s_add_u32 s55, s55, s33")
    p("s_mul_i32 s55, s55, 320")
    p(f"s_add_u32 s55, s55, {MISC}")
    p("v_lshlrev_b32 v7, 4, v4")
    p("v_add_u32 v8, s55, v7")
    p("v_cmp_eq_u32 vcc, 0, v3")
    p("s_nop 1")
    p("s_mov_b64 exec, vcc")
    for t in range(5):
        p(f"ds_write_b128 v8, {v4(CS+4*t)} offset:{t*64}")
    p("s_mov_b64 exec, -1")
    poll_phase0(p, 9, 6)
    p("v_and_b32 v9, 6, v3")
    p("v_lshlrev_b32 v9, 1, v9")
    p("v_and_b32 v10, 1, v3")
    p("v_lshl_add_u32 v9, v10, 1, v9")
    p("v_lshrrev_b32 v10, 3, v3")
    p("v_add_lshl_u32 v9, v9, v10, 2")
    p("s_lshl_b32 s55, s35, 10")
    p("s_lshl_b32 s56, s33, 8")
    p("s_add_u32 s55, s55, s56")
    p(f"s_add_u32 s56, s55, {WS_R}")
    SM = 212
    for j in range(4):
        p.vmop(f"buffer_load_dword v{SM+2*j}, v9, s[8:11], s55 offen offset:{WS_M + j*64} sc1", "sm")
        p.vmop(f"buffer_load_dword v{SM+2*j+1}, v9, s[8:11], s56 offen offset:{j*64} sc1", "sm")
    p.wait(lgkm=0)
    p("s_barrier")
    p("s_mul_i32 s55, s34, 1280")
    p(f"s_add_u32 s55, s55, {MISC}")
    p("v_add_u32 v8, s55, v7")
    T = L["FS"]
    for w in range(4):
        for t in range(5):
            dstr = CS + 4 * t if w == 0 else T + ((w - 1) * 5 + t) * 4
            p(f"ds_read_b128 {v4(dstr)}, v8 offset:{w*320 + t*64}")
    p.wait(lgkm=0)
    for w in range(1, 4):
        for t in range(5):
            for h in range(2):
                p(f"v_pk_add_f32 {v2(CS+4*t+2*h)}, {v2(CS+4*t+2*h)}, {v2(T+((w-1)*5+t)*4+2*h)}")
    p.wait(vm="sm")
    SQ = 220
    for j in range(4):
        p(f"v_mul_f32 v{SQ+2*j}, v{SM+2*j+1}, v{SM+2*j+1}")
        p(f"v_rcp_f32 v{SQ+2*j}, v{SQ+2*j}")
        p(f"v_mul_f32 v{SM+2*j+1}, 0xbfb8aa3b, v{SM+2*j+1}")
    for t in range(5):
        for j in range(4):
            for h in range(2):
                a = acc(t, j) + 2 * h
                p(f"v_pk_fma_f32 {v2(a)}, {v2(CS+4*t+2*h)}, {v2(SM+2*j)}, {v2(a)} op_sel_hi:[1,0,1] neg_lo:[0,1,0] neg_hi:[0,1,0]")

    def silu_mul(g, u, A, S, tmp):
        for h in range(2):
            p(f"v_pk_mul_f32 {v2(tmp+2*h)}, {v2(g+2*h)}, {v2(A)} op_sel:[0,1] op_sel_hi:[1,1]")
        for r in range(4):
            p(f"v_exp_f32 v{tmp+r}, v{tmp+r}")
        for h in range(2):
            p(f"v_pk_mul_f32 {v2(g+2*h)}, {v2(g+2*h)}, {v2(u+2*h)}")
        for h in range(2):
            p(f"v_pk_fma_f32 {v2(tmp+2*h)}, {v2(tmp+2*h)}, {v2(S)}, {v2(S)} op_sel_hi:[1,0,0]")
        for r in range(4):
            p(f"v_rcp_f32 v{tmp+r}, v{tmp+r}")
        for h in range(2):
            p(f"v_pk_mul_f32 {v2(g+2*h)}, {v2(g+2*h)}, {v2(tmp+2*h)}")

    p("s_lshl_b32 s55, s35, 4")
    p("s_lshl_b32 s56, s33, 2")
    p("s_add_u32 s55, s55, s56")
    p("s_mul_i32 s55, s55, 54")
    p("s_lshr_b32 s56, s36, 1")
    p("s_mul_i32 s56, s56, 5")
    p("s_and_b32 s57, s36, 1")
    p("s_lshl_b32 s57, s57, 1")
    p("s_add_u32 s57, s57, s34")
    p("s_add_u32 s58, s56, s57")
    p("s_add_u32 s58, s58, s55")
    p("s_lshl_b32 s58, s58, 10")
    p(f"s_add_u32 s58, s58, {WS_HH}")
    p("s_add_u32 s59, s56, 4")
    p("s_min_u32 s59, s59, 53")
    p("s_add_u32 s59, s59, s55")
    p("s_lshl_b32 s59, s59, 10")
    p("s_lshl_b32 s57, s57, 8")
    p("s_add_u32 s59, s59, s57")
    p(f"s_add_u32 s59, s59, {WS_HH}")
    p("s_cmp_eq_u32 s36, 21")
    p("s_cselect_b32 s60, s34, 0")
    p("s_cmp_eq_u32 s60, 1")
    p(f"s_cselect_b32 s58, {WS_SIZE}, s58")
    for j in range(4):
        for t in range(2):
            silu_mul(acc(t, j), acc(t + 2, j), SM + 2 * j, SQ + 2 * j, T + 4 * t)
        o = T + 8 + (j & 1) * 4
        for t in range(2):
            for h in range(2):
                p(f"v_cvt_pk_bf16_f32 v{o+2*t+h}, v{acc(t,j)+2*h}, v{acc(t,j)+2*h+1}")
        p(f"buffer_store_dwordx4 {v4(o)}, v5, s[8:11], s58 offen sc1")
        if j < 3:
            p(f"s_add_u32 s58, s58, {54*1024}")
    p("v_cmp_gt_u32 vcc, 32, v1")
    for jj in range(2):
        j = 2 * jj
        for r in range(4):
            p(f"v_permlane32_swap_b32 v{acc(4,j)+r}, v{acc(4,j+1)+r}")
        p(f"v_cndmask_b32 v{SM+2*j+1}, v{SM+2*j+3}, v{SM+2*j+1}, vcc")
        p(f"v_cndmask_b32 v{SQ+2*j}, v{SQ+2*j+2}, v{SQ+2*j}, vcc")
        silu_mul(acc(4, j), acc(4, j + 1), SM + 2 * j, SQ + 2 * j, T + 16 + 4 * jj)
        for h in range(2):
            p(f"v_cvt_pk_bf16_f32 v{T+24+2*jj+h}, v{acc(4,j)+2*h}, v{acc(4,j)+2*h+1}")
    p(f"v_permlane16_swap_b32 v{T+24}, v{T+26}")
    p(f"v_permlane16_swap_b32 v{T+25}, v{T+27}")
    p("v_and_b32 v9, 1, v4")
    p("v_lshrrev_b32 v10, 1, v4")
    p("v_lshl_add_u32 v9, v9, 1, v10")
    p(f"v_mul_u32_u24 v9, {54*1024}, v9")
    p("v_lshl_add_u32 v9, v3, 4, v9")
    p(f"buffer_store_dwordx4 {v4(T+24)}, v9, s[8:11], s59 offen sc1")
    k1_retile_w2(p)
    p("s_branch L_k1_end")


def cpow(p, d, n, a2, br, t):
    p(f"v_mul_f32 v{t}, {n}, v{a2}")
    p(f"v_mul_f32 v{t+1}, {n}, v{br}")
    p(f"v_exp_f32 v{t}, v{t}")
    p(f"v_fract_f32 v{t+1}, v{t+1}")
    p(f"v_cos_f32 v{d}, v{t+1}")
    p(f"v_sin_f32 v{d+1}, v{t+1}")
    p(f"v_mul_f32 v{d}, v{t}, v{d}")
    p(f"v_mul_f32 v{d+1}, v{t}, v{d+1}")


def flit(x):
    import struct
    return "0x%08x" % struct.unpack("<I", struct.pack("<f", x))[0]


def k1_ssm(p):
    L = k1_mainloop(p, "ssm")
    VX, VW, LA, ONES, CS = L["VX"], L["VW"], L["LA"], L["ONES"], L["CS"]
    acc = L["acc"]
    p("L_k1_ssm:")
    p.fence()
    p("s_mov_b32 s36, s48")
    p("s_lshl_b32 s55, s36, 7")
    p("s_lshl_b32 s56, s34, 6")
    p("s_add_u32 s55, s55, s56")
    p("v_lshlrev_b32 v7, 1, v3")
    PR = 240
    for k, nm in enumerate(["lre", "lim", "ldt"]):
        srd(p, 28, KA[nm], 1280)
        for ct in range(2):
            p.vmop(f"buffer_load_ushort v{PR+2*k+ct}, v7, s[28:31], s55 offen offset:{32*ct}", "st")
    x_dma_offsets(p, VX, True)
    p("s_bitcmp1_b32 s32, 1")
    for s in (16, 20):
        p(f"s_cselect_b32 s{s}, s{KA['bim']}, s{KA['bre']}")
        p(f"s_cselect_b32 s{s+1}, s{KA['bim']+1}, s{KA['bre']+1}")
        p(f"s_mov_b32 s{s+2}, {640*1280}")
        p(f"s_mov_b32 s{s+3}, 0x20000")
    p("s_lshl_b32 s55, s36, 6")
    p("s_lshl_b32 s56, s34, 5")
    p("s_add_u32 s55, s55, s56")
    p("s_and_b32 s56, s32, 1")
    p("s_lshl_b32 s56, s56, 4")
    p("s_add_u32 s55, s55, s56")
    p("s_lshl_b32 s41, s32, 11")
    p("s_add_u32 s41, s41, 32768")
    p("s_add_u32 s42, s41, 1024")
    p("v_lshrrev_b32 v7, 3, v1")
    p("v_and_b32 v8, 7, v1")
    for i in range(2):
        p(f"v_add_u32 v9, {8*i}, v7")
        p("v_lshrrev_b32 v10, 1, v9")
        p("v_xor_b32 v10, v10, v8")
        p("v_add_u32 v9, s55, v9")
        p("v_mul_u32_u24 v9, 1280, v9")
        p(f"v_lshl_add_u32 v{VW+i}, v10, 4, v9")
    for st in range(3):
        L["emit"](L["dma"](st))
    x_lds_addrs(p, LA, 0, 0, 33)
    x_lds_addrs(p, LA, 2, 32768, 34)
    for i in range(4):
        p(f"v_mov_b32 v{ONES+i}, 0x3f803f80")
    k1_stats(p)
    p("s_mul_i32 s57, s35, 5120")
    p("s_lshl_b32 s58, s36, 1")
    p("s_add_u32 s58, s58, s34")
    p("s_lshl_b32 s58, s58, 8")
    p("s_add_u32 s57, s57, s58")
    p(f"s_add_u32 s57, s57, {WS_AGG}")
    p(f"s_add_u32 s58, s58, {WS_AGG}")
    for i in range(4):
        p(f"v_mov_b32 v{220+i}, -1")
    p("s_mov_b64 exec, 0xffff")
    p.vmop("buffer_store_dwordx4 v[220:223], v5, s[8:11], s57 offen sc1", "p0")
    p("s_mov_b64 exec, -1")
    A2, BR, LAM, L8, L16, L32, L64, C2 = 160, 162, 164, 168, 172, 176, 180, 184
    for ct in range(2):
        lre, lim, ldt = PR + ct, PR + 2 + ct, PR + 4 + ct
        for r in (lre, lim, ldt):
            p(f"v_lshlrev_b32 v{r}, 16, v{r}")
        p(f"v_mul_f32 v{ldt}, {hex(LOG2E)}, v{ldt}")
        p(f"v_exp_f32 v{ldt}, v{ldt}")
        rne_bf16(p, ldt)
        p(f"v_mul_f32 v{A2+ct}, v{ldt}, v{lre}")
        p(f"v_mul_f32 v{A2+ct}, {hex(LOG2E)}, v{A2+ct}")
        p(f"v_mul_f32 v{BR+ct}, v{ldt}, v{lim}")
        p(f"v_mul_f32 v{BR+ct}, {hex(INV2PI)}, v{BR+ct}")
        for d, n in ((LAM, 1.0), (L8, 8.0), (L16, 16.0), (L32, 32.0), (L64, 64.0)):
            cpow(p, d + 2 * ct, flit(n), A2 + ct, BR + ct, 224)
        p(f"v_mul_f32 v226, v{lre}, v{lre}")
        p(f"v_fmac_f32 v226, v{lim}, v{lim}")
        p("v_rcp_f32 v226, v226")
        p(f"v_add_f32 v227, -1.0, v{LAM+2*ct}")
        p("v_add_f32 v226, v226, v226")
        p(f"v_mul_f32 v228, v227, v{lre}")
        p(f"v_fmac_f32 v228, v{LAM+2*ct+1}, v{lim}")
        p(f"v_mul_f32 v229, v{LAM+2*ct+1}, v{lre}")
        p(f"v_fma_f32 v229, -v227, v{lim}, v229")
        p(f"v_mul_f32 v{C2+2*ct}, v228, v226")
        p(f"v_mul_f32 v{C2+2*ct+1}, v229, v226")
    k1_run_loop(p, L)
    T = L["FS"]
    SM, SR = 192, 208
    for t in range(4):
        p(f"v_mov_b32 v{T+t}, v{CS+4*t}")
    p("s_lshl_b32 s55, s32, 8")
    p(f"s_add_u32 s55, s55, {MISC}")
    p("v_lshlrev_b32 v7, 4, v3")
    p("v_add_u32 v8, s55, v7")
    p("s_mov_b64 exec, 0xffff")
    p(f"ds_write_b128 v8, {v4(T)}")
    p("s_mov_b64 exec, -1")
    poll_phase0(p, 9, 6)
    p("s_lshl_b32 s55, s35, 10")
    p("s_lshl_b32 s56, s33, 8")
    p("s_add_u32 s55, s55, s56")
    p(f"s_add_u32 s56, s55, {WS_R}")
    p("v_lshlrev_b32 v9, 6, v4")
    for m in range(4):
        p.vmop(f"buffer_load_dwordx4 {v4(SM+4*m)}, v9, s[8:11], s55 offen offset:{WS_M+16*m} sc1", "sm")
        p.vmop(f"buffer_load_dwordx4 {v4(SR+4*m)}, v9, s[8:11], s56 offen offset:{16*m} sc1", "sm")
    p.wait(lgkm=0)
    p("s_barrier")
    p("s_lshl_b32 s55, s34, 10")
    p(f"s_add_u32 s55, s55, {MISC}")
    p("v_add_u32 v8, s55, v7")
    for w in range(4):
        p(f"ds_read_b128 {v4(T+4*w)}, v8 offset:{w*256}")
    p.wait(lgkm=0)
    for w in range(1, 4):
        for h in range(2):
            p(f"v_pk_add_f32 {v2(T+2*h)}, {v2(T+2*h)}, {v2(T+4*w+2*h)}")
    p.wait(vm="sm")

    def RE(ct, i):
        return acc(ct, i >> 1) + 2 * (i & 1)

    def IM(ct, i):
        return acc(2 + ct, i >> 1) + 2 * (i & 1)

    def bc(k):
        return f"op_sel:[0,{k},0] op_sel_hi:[1,{k},1]"

    for i in range(8):
        for t in range(4):
            a = acc(t, i >> 1) + 2 * (i & 1)
            p(f"v_pk_fma_f32 {v2(a)}, {v2(SM+2*i)}, {v2(T+(t&2))}, {v2(a)} {bc(t&1)} neg_lo:[1,0,0] neg_hi:[1,0,0]")
        for t in range(4):
            a = acc(t, i >> 1) + 2 * (i & 1)
            p(f"v_pk_mul_f32 {v2(a)}, {v2(a)}, {v2(SR+2*i)}")
        if i:
            for ct in range(2):
                p(f"v_pk_fma_f32 {v2(RE(ct,i))}, {v2(RE(ct,i-1))}, {v2(LAM+2*ct)}, {v2(RE(ct,i))} {bc(0)}")
                p(f"v_pk_fma_f32 {v2(IM(ct,i))}, {v2(IM(ct,i-1))}, {v2(LAM+2*ct)}, {v2(IM(ct,i))} {bc(0)}")
            for ct in range(2):
                p(f"v_pk_fma_f32 {v2(RE(ct,i))}, {v2(IM(ct,i-1))}, {v2(LAM+2*ct)}, {v2(RE(ct,i))} {bc(1)} neg_lo:[1,0,0] neg_hi:[1,0,0]")
                p(f"v_pk_fma_f32 {v2(IM(ct,i))}, {v2(RE(ct,i-1))}, {v2(LAM+2*ct)}, {v2(IM(ct,i))} {bc(1)}")
    EA, X, Y, X2, Y2, E64 = 224, 228, 232, 236, 240, 244
    for ct in range(2):
        p(f"v_mov_b32 v{EA+2*ct}, v{RE(ct,7)}")
        p(f"v_mov_b32 v{EA+2*ct+1}, v{IM(ct,7)}")
        p(f"v_mov_b32 v{X+2*ct}, v{RE(ct,7)+1}")
        p(f"v_mov_b32 v{X+2*ct+1}, v{IM(ct,7)+1}")
    for ct in range(2):
        cmac(p, X + 2 * ct, EA + 2 * ct, L8 + 2 * ct, X + 2 * ct)
    for k in range(2):
        p(f"v_mov_b64 {v2(Y+2*k)}, {v2(X+2*k)}")
    for k in range(4):
        p(f"v_permlane16_swap_b32 v{X+k}, v{Y+k}")
    for ct in range(2):
        cmac(p, X2 + 2 * ct, X + 2 * ct, L16 + 2 * ct, Y + 2 * ct)
    for k in range(2):
        p(f"v_mov_b64 {v2(Y2+2*k)}, {v2(X2+2*k)}")
    for k in range(4):
        p(f"v_permlane32_swap_b32 v{X2+k}, v{Y2+k}")
    for ct in range(2):
        cmac(p, E64 + 2 * ct, X2 + 2 * ct, L32 + 2 * ct, Y2 + 2 * ct)
    p("s_lshl_b32 s55, s32, 8")
    p(f"s_add_u32 s55, s55, {MISC+2048}")
    p("v_add_u32 v10, s55, v7")
    p("s_mov_b64 exec, 0xffff")
    p(f"ds_write_b128 v10, {v4(E64)}")
    p("s_mov_b64 exec, -1")
    p.wait(lgkm=0)
    p("s_barrier")
    AG = T + 4
    for w in range(4):
        p(f"ds_read_b128 {v4(AG+4*w)}, v8 offset:{2048 + w*256}")
    p.wait(lgkm=0)
    for w in range(1, 4):
        for ct in range(2):
            cmac(p, AG + 4 * w + 2 * ct, AG + 4 * (w - 1) + 2 * ct, L64 + 2 * ct, AG + 4 * w + 2 * ct)
    p("s_cmp_lg_u32 s33, 3")
    with p.skip_if("s_cbranch_scc1"):
        for k in range(4):
            p(f"v_min_u32 v{E64+k}, 0xfffffffe, v{AG+12+k}")
        p("s_mov_b64 exec, 0xffff")
        p(f"buffer_store_dwordx4 {v4(E64)}, v5, s[8:11], s57 offen sc1")
        p("s_mov_b64 exec, -1")
    for k in range(4):
        p(f"v_mov_b32 v{Y2+k}, 0")
    for w in range(1, 4):
        p(f"s_cmp_eq_u32 s33, {w}")
        p("s_cselect_b64 s[62:63], -1, 0")
        for k in range(4):
            p(f"v_cndmask_b32 v{Y2+k}, v{Y2+k}, v{AG+4*(w-1)+k}, s[62:63]")
    K0, K1, LQ, BE = T + 20, T + 24, T + 28, Y
    p("v_and_b32 v11, 1, v4")
    p("v_cmp_eq_u32 vcc, 1, v11")
    p("v_cmp_lt_u32 s[62:63], 1, v4")
    for ct in range(2):
        p(f"v_cndmask_b32 v{K0+2*ct}, 0, v{X+2*ct}, vcc")
        p(f"v_cndmask_b32 v{K0+2*ct+1}, 0, v{X+2*ct+1}, vcc")
        p(f"v_cndmask_b32 v{BE+2*ct}, 1.0, v{L16+2*ct}, vcc")
        p(f"v_cndmask_b32 v{BE+2*ct+1}, 0, v{L16+2*ct+1}, vcc")
        p(f"v_cndmask_b32 v{BE+2*ct}, 0, v{BE+2*ct}, s[62:63]")
        p(f"v_cndmask_b32 v{BE+2*ct+1}, 0, v{BE+2*ct+1}, s[62:63]")
        cmac(p, K0 + 2 * ct, X2 + 2 * ct, BE + 2 * ct, K0 + 2 * ct)
    p("v_lshlrev_b32 v11, 4, v4")
    p("v_cvt_f32_u32 v12, v11")
    p("s_lshl_b32 s55, s33, 6")
    p("v_add_u32 v11, s55, v11")
    p("v_cvt_f32_u32 v13, v11")
    for ct in range(2):
        cpow(p, LQ + 2 * ct, "v12", A2 + ct, BR + ct, 14)
        cpow(p, K1 + 2 * ct, "v13", A2 + ct, BR + ct, 14)
        cmac(p, K0 + 2 * ct, Y2 + 2 * ct, LQ + 2 * ct, K0 + 2 * ct)
    MU = T + 4
    PA = 10
    for k in range(2):
        p(f"v_add_u32 v12, {4*k+1}, v4")
        p("v_sub_u32 v13, s35, v12")
        p("v_cmp_ge_u32 vcc, s35, v12")
        p("v_cndmask_b32 v13, 0, v13, vcc")
        p("v_lshlrev_b32 v13, 8, v13")
        p("v_cvt_f32_u32 v13, v13")
        p(f"v_add_u32 v12, {4*k}, v4")
        p("v_mul_u32_u24 v12, 5120, v12")
        p("v_add_u32 v12, v12, v7")
        p(f"v_mov_b32 v2, {WS_SIZE}")
        p(f"v_cndmask_b32 v{PA+k}, v2, v12, vcc")
        for ct in range(2):
            cpow(p, MU + 4 * k + 2 * ct, "v13", A2 + ct, BR + ct, 14)
    def PP(ct, i):
        return 192 + (ct * 8 + i) * 2
    for i in range(8):
        for ct in range(2):
            cmac(p, PP(ct, i), (C2 + 2 * ct) if i == 0 else PP(ct, i - 1), LAM + 2 * ct, None)
    def GR(ct, i):
        return T + 32 + (ct * 8 + i) * 2
    for i in range(8):
        for ct in range(2):
            c = v2(C2 + 2 * ct)
            p(f"v_pk_mul_f32 {v2(GR(ct,i))}, {v2(RE(ct,i))}, {c} op_sel_hi:[1,0]")
            p(f"v_pk_fma_f32 {v2(GR(ct,i))}, {v2(IM(ct,i))}, {c}, {v2(GR(ct,i))} {bc(1)} neg_lo:[1,0,0] neg_hi:[1,0,0]")
            p(f"v_pk_mul_f32 {v2(IM(ct,i))}, {v2(IM(ct,i))}, {c} op_sel_hi:[1,0] neg_lo:[1,0] neg_hi:[1,0]")
            p(f"v_pk_fma_f32 {v2(IM(ct,i))}, {v2(RE(ct,i))}, {c}, {v2(IM(ct,i))} {bc(1)} neg_lo:[1,0,0] neg_hi:[1,0,0]")
    p("v_mul_u32_u24 v12, 40960, v4")
    p("v_add_u32 v13, v12, v7")
    p("v_xor_b32 v12, 64, v13")
    p("v_add_u32 v12, 20480, v12")
    p("s_lshl_b32 s55, s35, 5")
    p("s_lshl_b32 s56, s33, 3")
    p("s_add_u32 s55, s55, s56")
    p("s_mul_i32 s55, s55, 20480")
    p("s_lshl_b32 s56, s36, 10")
    p("s_add_u32 s55, s55, s56")
    p("s_lshl_b32 s56, s34, 9")
    p("s_add_u32 s55, s55, s56")
    p(f"s_add_u32 s55, s55, {WS_H}")
    p("s_add_u32 s56, s55, 10240")
    V0 = T + 12
    lab = p.label("Lag")
    done = p.label("Lagd")
    p("s_mov_b32 s60, 0")
    p(f"{lab}:")
    for k in range(2):
        p(f"buffer_load_dwordx4 {v4(V0+4*k)}, v{PA+k}, s[8:11], s58 offen sc1")
    p("s_waitcnt vmcnt(0)")
    p(f"v_max_u32 v2, v{V0}, v{V0+1}")
    p(f"v_max3_u32 v2, v2, v{V0+2}, v{V0+3}")
    p(f"v_max3_u32 v2, v2, v{V0+4}, v{V0+5}")
    p(f"v_max3_u32 v2, v2, v{V0+6}, v{V0+7}")
    p("v_cmp_eq_u32 vcc, -1, v2")
    p("s_nop 1")
    p("s_cmp_eq_u64 vcc, 0")
    p(f"s_cbranch_scc1 {done}")
    p("s_sleep 1")
    p("s_add_u32 s60, s60, 1")
    p(f"s_cmp_lt_u32 s60, {SPIN_MAX}")
    p(f"s_cbranch_scc1 {lab}")
    p(f"{done}:")
    p.vm = []
    for ct in range(2):
        cmac(p, X + 2 * ct, V0 + 2 * ct, MU + 2 * ct, None)
        cmac(p, X + 2 * ct, V0 + 4 + 2 * ct, MU + 4 + 2 * ct, X + 2 * ct)
    for sw in ("v_permlane16_swap_b32", "v_permlane32_swap_b32"):
        for k in range(2):
            p(f"v_mov_b64 {v2(Y+2*k)}, {v2(X+2*k)}")
        for k in range(4):
            p(f"{sw} v{X+k}, v{Y+k}")
        for k in range(2):
            p(f"v_pk_add_f32 {v2(X+2*k)}, {v2(X+2*k)}, {v2(Y+2*k)}")
    for ct in range(2):
        cmac(p, K0 + 2 * ct, X + 2 * ct, K1 + 2 * ct, K0 + 2 * ct)
    for ct in range(2):
        cmac(p, EA + 2 * ct, K0 + 2 * ct, L8 + 2 * ct, EA + 2 * ct)
    for ct in range(2):
        p(f"v_mov_b32 v{X2+2*ct}, v{K0+2*ct}")
        p(f"v_mov_b32 v{X2+2*ct+1}, v{EA+2*ct}")
        p(f"v_mov_b32 v{Y2+2*ct}, v{K0+2*ct+1}")
        p(f"v_mov_b32 v{Y2+2*ct+1}, v{EA+2*ct+1}")
    for ct in range(2):
        CR, CI = v2(X2 + 2 * ct), v2(Y2 + 2 * ct)
        for i in range(8):
            P = v2(PP(ct, i))
            p(f"v_pk_fma_f32 {v2(GR(ct,i))}, {CR}, {P}, {v2(GR(ct,i))} {bc(0)}")
            p(f"v_pk_fma_f32 {v2(IM(ct,i))}, {CI}, {P}, {v2(IM(ct,i))} {bc(0)} neg_lo:[1,0,0] neg_hi:[1,0,0]")
            p(f"v_pk_fma_f32 {v2(GR(ct,i))}, {CI}, {P}, {v2(GR(ct,i))} {bc(1)} neg_lo:[1,0,0] neg_hi:[1,0,0]")
            p(f"v_pk_fma_f32 {v2(IM(ct,i))}, {CR}, {P}, {v2(IM(ct,i))} {bc(1)} neg_lo:[1,0,0] neg_hi:[1,0,0]")
        n = 0
        for part, f in enumerate((GR, IM)):
            for seg in range(2):
                o = acc(ct, n)
                n += 1
                for k in range(4):
                    p(f"v_cvt_pk_bf16_f32 v{o+k}, v{f(ct,2*k)+seg}, v{f(ct,2*k+1)+seg}")
                p(f"buffer_store_dwordx4 {v4(o)}, v{13 if seg == 0 else 12}, s[8:11], s{55+part} offen offset:{256*ct} sc1")
    k1_retile_w2(p)


def gen_k1(p):
    p(".globl k1_kernel")
    p(".p2align 8")
    p(".type k1_kernel,@function")
    p("k1_kernel:")
    k1_common_prologue(p)
    vm0 = list(p.vm)
    k1_mlp(p)
    p.vm = vm0
    k1_ssm(p)
    p("L_k1_end:")
    p("s_endpgm")


def main():
    from gen_k2 import gen_k2
    p = Prog()
    hdr = open("recurrent_scan__ssm_conv_s5__glu_gated_swiglu__prompt.s.ref").read().split("\n")
    hdr = [l for l in hdr if l.startswith(";") and "@launch" not in l and "Override launch" not in l and "grid=ceil" not in l]
    out = "\n".join(hdr) + "\n"
    out += "; @launch kernel=k1_kernel grid=(256,1,1) block=(512,1,1) lds=163840\n"
    out += "; @launch kernel=k2_kernel grid=(256,1,1) block=(512,1,1) lds=163840\n"
    out += '.amdgcn_target "amdgcn-amd-amdhsa--gfx950"\n.text\n'
    gen_k1(p)
    gen_k2(p)
    out += p.finalize()
    out += '.section .rodata,"a"\n' + kernel_desc("k1_kernel") + kernel_desc("k2_kernel")
    path = sys.argv[1] if len(sys.argv) > 1 else "recurrent_scan__ssm_conv_s5__glu_gated_swiglu__prompt.s"
    open(path, "w").write(out)
    print("wrote", path, len(out), "bytes")


if __name__ == "__main__":
    main()
```

```python
import re

TRANS = ("v_exp_f32", "v_log_f32", "v_rcp_f32", "v_rsq_f32", "v_sqrt_f32", "v_sin_f32", "v_cos_f32")
_REG = re.compile(r"^-?\|?(v|s|a)(\d+)\|?$|^-?\|?(v|s|a)\[(\d+):(\d+)\]\|?$")


def regs_of(op):
    op = op.strip()
    if op.startswith("abs(") or op.startswith("neg("):
        op = op[4:-1]
    if op in ("vcc", "vcc_lo", "vcc_hi"):
        return ("s", {"vcc"})
    if op in ("exec", "exec_lo", "exec_hi"):
        return ("s", {"exec"})
    if op == "m0":
        return ("s", {"m0"})
    m = _REG.match(op)
    if not m:
        return None
    if m.group(1):
        return (m.group(1), {int(m.group(2))})
    return (m.group(3), set(range(int(m.group(4)), int(m.group(5)) + 1)))


class Ins:
    __slots__ = ("text", "mn", "cls", "vd", "vs", "sd", "ss", "opt", "a", "b", "c", "wide", "dpp", "ws", "data")

    def __init__(self, text, opt):
        self.text = text
        self.opt = opt
        t = text.split(";")[0].strip()
        parts = t.split(None, 1)
        mn = parts[0]
        self.mn = mn
        rest = parts[1] if len(parts) > 1 else ""
        ops, depth, cur = [], 0, ""
        for ch in rest:
            if ch in "[(":
                depth += 1
            if ch in "])":
                depth -= 1
            if ch == "," and depth == 0:
                ops.append(cur.strip())
                cur = ""
            else:
                cur += ch
        if cur.strip():
            ops.append(cur.strip())
        mods = ""
        if ops:
            sp = ops[-1].split(None, 1)
            ops[-1] = sp[0]
            mods = sp[1] if len(sp) > 1 else ""
        assert not (mn.startswith("v_pk_") and re.search(r"op_sel:\[[01],1", mods)), text
        self.vd, self.vs, self.sd, self.ss = set(), set(), set(), set()
        self.a = self.b = self.c = set()
        self.wide = False
        self.data = set()
        self.dpp = "_dpp" in mn or "quad_perm" in mods or "row_" in mods
        self.ws = 1

        def src(o):
            r = regs_of(o)
            if r is None:
                return set()
            (self.vs if r[0] == "v" else self.ss).update(r[1])
            return r[1] if r[0] == "v" else set()

        def dst(o):
            r = regs_of(o)
            if r is None:
                return
            (self.vd if r[0] == "v" else self.sd).update(r[1])

        if mn.startswith("v_mfma"):
            self.cls = "mfma"
            dst(ops[0])
            self.a = src(ops[1])
            self.b = src(ops[2])
            self.c = src(ops[3])
        elif mn.startswith("v_"):
            base = mn.replace("_e32", "").replace("_e64", "").replace("_dpp", "")
            self.cls = "trans" if base in TRANS else "valu"
            if "permlane" in mn and "swap" in mn:
                self.cls = "perm"
                for o in ops[:2]:
                    dst(o)
                    src(o)
            else:
                dst(ops[0])
                k = 1
                if base in ("v_add_co_u32", "v_sub_co_u32", "v_addc_co_u32", "v_subrev_co_u32"):
                    dst(ops[1])
                    k = 2
                for o in ops[k:]:
                    src(o)
                if base in ("v_fmac_f32", "v_pk_fmac_f16", "v_dot2c_f32_bf16") or self.dpp:
                    src(ops[0])
                if base == "v_cndmask_b32" and len(ops) == 3:
                    self.ss.add("vcc")
                if base in ("v_readlane_b32", "v_readfirstlane_b32"):
                    self.cls = "rdlane"
        elif mn.startswith("buffer_") or mn.startswith("global_"):
            self.cls = "vmem"
            if mn in ("buffer_inv", "buffer_wbl2"):
                pass
            elif " lds" in (" " + mods) or mn.startswith("global_load_lds"):
                for o in ops:
                    src(o)
                self.ss.add("m0")
                self.cls = "dma"
            elif "load" in mn:
                dst(ops[0])
                for o in ops[1:]:
                    src(o)
            else:
                if mn.startswith("buffer_"):
                    self.data = src(ops[0])
                    for o in ops[1:]:
                        src(o)
                else:
                    src(ops[0])
                    self.data = src(ops[1])
                    for o in ops[2:]:
                        src(o)
                self.wide = mn.endswith("x4") or mn.endswith("x3")
                if "atomic" in mn and "sc0" in mods:
                    dst(ops[0])
        elif mn.startswith("ds_"):
            self.cls = "ds"
            if "read" in mn or "permute" in mn or "swizzle" in mn:
                dst(ops[0])
                for o in ops[1:]:
                    src(o)
            else:
                for o in ops:
                    src(o)
        elif mn.startswith("s_"):
            self.cls = "salu"
            if mn == "s_nop":
                self.ws = int(ops[0], 0) + 1
            elif mn.startswith("s_cmp") or mn.startswith("s_bitcmp") or mn.startswith("s_cbranch") or mn in (
                    "s_waitcnt", "s_barrier", "s_branch", "s_endpgm", "s_setprio", "s_sleep"):
                for o in ops:
                    src(o)
            else:
                if ops:
                    dst(ops[0])
                for o in ops[1:]:
                    src(o)
                if "saveexec" in mn:
                    self.sd.add("exec")
        else:
            raise ValueError("unknown instruction " + text)


VALU_LIKE = ("valu", "trans", "perm", "rdlane")


def need(p, c):
    n = 0
    if p.cls in VALU_LIKE:
        if c.cls == "mfma" and p.vd & c.vs:
            n = max(n, 2)
        if p.cls == "trans" and p.vd & c.vs:
            n = max(n, 1)
        if p.mn.startswith("v_pk_") and c.cls in VALU_LIKE and p.vd & (c.vs | c.vd):
            n = max(n, 1)
        if c.cls in VALU_LIKE and p.vd & c.vs:
            if c.dpp or c.cls == "perm":
                n = max(n, 2)
            if c.cls == "rdlane":
                n = max(n, 1)
        if p.sd:
            if c.cls in VALU_LIKE + ("mfma",) and p.sd & c.ss:
                n = max(n, 4 if c.cls == "rdlane" else 2)
            if c.cls in ("vmem", "dma") and p.sd & c.ss:
                n = max(n, 5)
            if c.cls == "salu" and p.sd & c.ss:
                n = max(n, 1)
    if p.cls == "mfma":
        if c.cls == "mfma":
            if p.vd & (c.a | c.b):
                n = max(n, 8)
            if p.vd & c.c and p.vd != c.c:
                n = max(n, 6)
            if p.vd & c.vd and p.vd != c.c:
                n = max(n, 8)
        elif c.cls in VALU_LIKE + ("vmem", "dma", "ds"):
            if p.vd & (c.vs | c.vd):
                n = max(n, 8)
            if p.c & c.vd:
                n = max(n, 3)
    if p.cls == "salu" and "m0" in p.sd and c.cls == "dma":
        n = max(n, 1)
    if p.cls == "vmem" and p.wide and p.data & c.vd:
        n = max(n, 2 if c.cls in VALU_LIKE + ("mfma",) else 1)
    if p.cls == "ds" and not p.vd and c.cls in VALU_LIKE and (p.mn.endswith("b128") or p.mn.endswith("b96")) and p.vs & c.vd:
        n = max(n, 1)
    return n


class Prog:
    def __init__(self):
        self.items = []
        self.opt = None
        self.nopt = 0
        self.vm = []
        self.nlabel = 0

    def __call__(self, text):
        for line in text.split("\n"):
            line = line.strip()
            if not line:
                continue
            if line.startswith(";") or line.endswith(":") or line.startswith("."):
                self.items.append(line)
            else:
                self.items.append(Ins(line, self.opt))

    def raw(self, text):
        self.items.append(text)

    def label(self, base="L"):
        self.nlabel += 1
        return f"{base}_{self.nlabel}"

    class _Opt:
        def __init__(self, p, branch):
            self.p, self.branch = p, branch

        def __enter__(self):
            p = self.p
            assert p.opt is None
            self.lab = p.label("Lskip")
            p(f"{self.branch} {self.lab}")
            p.nopt += 1
            p.opt = p.nopt

        def __exit__(self, *a):
            self.p.opt = None
            self.p(f"{self.lab}:")

    def skip_if(self, branch):
        return Prog._Opt(self, branch)

    def vmop(self, text, tag):
        self(text)
        self.vm.append(tag)

    def vm_n(self, tag):
        if tag not in self.vm:
            return None
        idx = len(self.vm) - 1 - self.vm[::-1].index(tag)
        return len(self.vm) - 1 - idx

    def wait(self, vm=None, lgkm=None):
        parts = []
        if vm is not None:
            if isinstance(vm, int):
                n = vm
            else:
                n = self.vm_n(vm)
            if n is not None:
                assert n <= 63
                parts.append(f"vmcnt({n})")
                self.vm = self.vm[len(self.vm) - n:] if n else []
        if lgkm is not None:
            parts.append(f"lgkmcnt({lgkm})")
        if parts:
            self("s_waitcnt " + " ".join(parts))

    def fence(self):
        self("s_nop 7")
        self("s_nop 1")

    def finalize(self):
        out = []
        hist = []
        for it in self.items:
            if isinstance(it, str):
                out.append(it)
                continue
            c = it
            req = 0
            dist = 0
            inner = 0
            cur_foreign = None
            for p in reversed(hist[-40:]):
                foreign = p.opt is not None and p.opt != c.opt
                if foreign:
                    if cur_foreign != p.opt:
                        cur_foreign = p.opt
                        inner = 0
                    d = dist + inner
                    inner += p.ws
                else:
                    cur_foreign = None
                    d = dist
                    dist += p.ws
                n = need(p, c)
                if n > d:
                    req = max(req, n - d)
                if dist > 12:
                    break
            if req:
                nop = Ins(f"s_nop {req - 1}", c.opt)
                hist.append(nop)
                out.append("    " + nop.text)
            hist.append(c)
            out.append("    " + c.text)
        return "\n".join(out) + "\n"


class Defer:
    def __init__(self, p, auto=2):
        self.p = p
        self.units = [[]]
        self.auto = auto
        self.n = 0
        self.lock = 0

    def cut(self):
        if self.units[-1] and not self.lock:
            self.units.append([])
            self.n = 0

    def _add(self, f):
        self.units[-1].append(f)
        self.n += 1
        if self.auto and self.n >= self.auto:
            self.cut()

    def __call__(self, text):
        self._add(text)

    def vmop(self, text, tag):
        self._add(lambda: self.p.vmop(text, tag))

    def wait(self, vm=None, lgkm=None):
        self._add(lambda: self.p.wait(vm=vm, lgkm=lgkm))

    def label(self, base="L"):
        return self.p.label(base)

    class _Ctx:
        def __init__(self, d, branch):
            self.d, self.branch = d, branch

        def __enter__(self):
            d = self.d
            d.lock += 1
            if self.branch:
                self.o = d.p.skip_if(self.branch)
                d.units[-1].append(lambda o=self.o: o.__enter__())

        def __exit__(self, *a):
            d = self.d
            if self.branch:
                d.units[-1].append(lambda o=self.o: o.__exit__())
            d.lock -= 1
            d.cut()

    def atomic(self):
        return Defer._Ctx(self, None)

    def skip_if(self, branch):
        return Defer._Ctx(self, branch)

    def done(self):
        return [u for u in self.units if u]


class _Null:
    def __enter__(self):
        pass

    def __exit__(self, *a):
        pass


Prog.atomic = lambda self: _Null()
Prog.cut = lambda self: None


def kernel_desc(name, nv=256, ns=102):
    return f""".p2align 6
.amdhsa_kernel {name}
  .amdhsa_next_free_vgpr {nv}
  .amdhsa_next_free_sgpr {ns}
  .amdhsa_accum_offset {(nv + 3) // 4 * 4}
  .amdhsa_group_segment_fixed_size 0
  .amdhsa_kernarg_size 128
  .amdhsa_user_sgpr_count 2
  .amdhsa_user_sgpr_kernarg_segment_ptr 1
  .amdhsa_system_sgpr_workgroup_id_x 1
.end_amdhsa_kernel
"""
```

```python
import sys, os, struct
from asmlib import Prog, Defer, kernel_desc

KNAME = "recurrent_scan__ssm_conv_s5__glu_gated_swiglu__prompt_kernel"
WS_M = 0
WS_R = 8192
WS_AGG = 0x10000
WS_FLAG = 0x20000
WS_CNT = 0x30000
WS_W2T = 0x100000
WS_HH = 0x400000
WS_H = 0xC00000
WS_S = 0x1200000
WS_PROF = 0x1700000
WS_SIZE = 0x1800000

SLOT = 53248
MISC = 3 * SLOT
WSL = 10240
NW = 15
TRS = 0
ROT = int(os.environ.get('ROT', '1'))
LOG2E = 0x3fb8aa3b
INV2PI = 0x3e22f983
SPIN_MAX = 100000
PROF = int(os.environ.get("PROF", "0"))
PV = 255

KA = dict(x=64, lre=66, lim=68, bre=70, bim=72, cre=74, cim=76, ldt=78, dsk=80, bx=82, w1=84, w3=86, w2=88, out=90, dbg=92, ws=94)


def stamp(p, k, lvl=1):
    if PROF < lvl:
        return
    p("s_memrealtime s[98:99]")
    if k in (5, 16, 26, 40):
        p("s_memtime s[100:101]")
    p("s_waitcnt lgkmcnt(0)")
    p(f"v_writelane_b32 v{PV}, s98, {k}")
    if k in (5, 16, 26, 40):
        p(f"v_writelane_b32 v{PV}, s100, {60 + (5, 16, 26, 40).index(k)}")


def stamp_flush(p):
    if not PROF:
        return
    p("s_mov_b64 exec, -1")
    p("s_lshl_b32 s98, s2, 3")
    p("s_add_u32 s98, s98, s32")
    p("s_lshl_b32 s98, s98, 8")
    p(f"s_add_u32 s98, s98, {WS_PROF}")
    p(f"buffer_store_dword v{PV}, v6, s[8:11], s98 offen")


def v4(b):
    return f"v[{b}:{b+3}]"


def v2(b):
    return f"v[{b}:{b+1}]"


def flit(x):
    return "0x%08x" % struct.unpack("<I", struct.pack("<f", x))[0]


def srd(p, s, ptr, nbytes):
    p(f"s_mov_b32 s{s}, s{ptr}")
    p(f"s_mov_b32 s{s+1}, s{ptr+1}")
    p(f"s_mov_b32 s{s+2}, {nbytes}")
    p(f"s_mov_b32 s{s+3}, 0x20000")


def emit(p, u):
    for x in u:
        x() if callable(x) else p(x)


def sched(p, mf, fill=(), at=None, bg=None):
    fill = list(fill)
    at = dict(at or {})
    for i, m in enumerate(mf):
        if i in at:
            emit(p, at[i][0])
        p(m)
        if fill:
            emit(p, fill.pop(0))
        if i in at:
            emit(p, at.pop(i)[1])
        elif bg:
            emit(p, bg.pop(0))
    for u in fill:
        emit(p, u)
    assert not at


def wave_sum(p, v, sdst):
    p(f"v_add_f32_dpp v{v}, v{v}, v{v} quad_perm:[1,0,3,2] row_mask:0xf bank_mask:0xf")
    p(f"v_add_f32_dpp v{v}, v{v}, v{v} quad_perm:[2,3,0,1] row_mask:0xf bank_mask:0xf")
    p(f"v_add_f32_dpp v{v}, v{v}, v{v} row_half_mirror row_mask:0xf bank_mask:0xf")
    p(f"v_add_f32_dpp v{v}, v{v}, v{v} row_mirror row_mask:0xf bank_mask:0xf")
    p(f"v_add_f32_dpp v{v}, v{v}, v{v} row_bcast:15 row_mask:0xa bank_mask:0xf")
    p(f"v_add_f32_dpp v{v}, v{v}, v{v} row_bcast:31 row_mask:0xc bank_mask:0xf")
    p(f"v_readlane_b32 s{sdst}, v{v}, 63")


def rne_bf16(p, v):
    p(f"v_cvt_pk_bf16_f32 v{v}, v{v}, v{v}")
    p(f"v_and_b32 v{v}, 0xffff0000, v{v}")


def cmac(p, d, a, m, c):
    if c is None:
        p(f"v_pk_mul_f32 {v2(d)}, {v2(a)}, {v2(m)} op_sel_hi:[1,0]")
    else:
        p(f"v_pk_fma_f32 {v2(d)}, {v2(a)}, {v2(m)}, {v2(c)} op_sel_hi:[1,0,1]")
    p(f"v_fma_f32 v{d}, -v{a+1}, v{m+1}, v{d}")
    p(f"v_fma_f32 v{d+1}, v{a}, v{m+1}, v{d+1}")


def cmacs(p, lst):
    for d, a, m, c in lst:
        if c is None:
            p(f"v_pk_mul_f32 {v2(d)}, {v2(a)}, {v2(m)} op_sel_hi:[1,0]")
        else:
            p(f"v_pk_fma_f32 {v2(d)}, {v2(a)}, {v2(m)}, {v2(c)} op_sel_hi:[1,0,1]")
    for d, a, m, c in lst:
        p(f"v_fma_f32 v{d}, -v{a+1}, v{m+1}, v{d}")
    for d, a, m, c in lst:
        p(f"v_fma_f32 v{d+1}, v{a}, v{m+1}, v{d+1}")


def cpow(p, d, n, a2, br, t):
    p(f"v_mul_f32 v{t}, {n}, v{a2}")
    p(f"v_mul_f32 v{t+1}, {n}, v{br}")
    p(f"v_exp_f32 v{t}, v{t}")
    p(f"v_fract_f32 v{t+1}, v{t+1}")
    p(f"v_cos_f32 v{d}, v{t+1}")
    p(f"v_sin_f32 v{d+1}, v{t+1}")
    p(f"v_mul_f32 v{d}, v{t}, v{d}")
    p(f"v_mul_f32 v{d+1}, v{t}, v{d+1}")


def unpack4(p, d, s):
    p(f"v_lshlrev_b32 v{d}, 16, v{s}")
    p(f"v_and_b32 v{d+1}, 0xffff0000, v{s}")
    p(f"v_lshlrev_b32 v{d+2}, 16, v{s+1}")
    p(f"v_and_b32 v{d+3}, 0xffff0000, v{s+1}")


def perm_pos(p, d, t):
    p(f"v_and_b32 v{d}, 6, v3")
    p(f"v_lshlrev_b32 v{d}, 1, v{d}")
    p(f"v_and_b32 v{t}, 1, v3")
    p(f"v_lshl_add_u32 v{d}, v{t}, 1, v{d}")
    p(f"v_lshrrev_b32 v{t}, 3, v3")
    p(f"v_add_lshl_u32 v{d}, v{d}, v{t}, 2")


def prologue(p):
    p("s_cmp_ge_u32 s2, 256")
    p("s_cbranch_scc1 L_end")
    if PROF:
        p(f"v_mov_b32 v{PV}, 0")
    stamp(p, 0)
    p("s_load_dwordx16 s[64:79], s[0:1], 0")
    p("s_load_dwordx16 s[80:95], s[0:1], 64")
    p("v_lshrrev_b32 v2, 6, v0")
    p("v_and_b32 v1, 63, v0")
    p("v_readfirstlane_b32 s32, v2")
    p("s_and_b32 s38, s2, 7")
    p("s_lshr_b32 s39, s2, 3")
    p("s_and_b32 s35, s38, 1")
    p("s_lshl_b32 s35, s35, 2")
    p("s_and_b32 s46, s39, 3")
    p("s_add_u32 s35, s35, s46")
    p("s_lshr_b32 s46, s38, 1")
    p("s_lshr_b32 s47, s39, 2")
    p("s_lshl_b32 s37, s46, 3")
    p("s_add_u32 s37, s37, s47")
    p("s_and_b32 s33, s32, 3")
    p("s_lshr_b32 s34, s32, 2")
    p("s_mul_i32 s48, s46, 5")
    p("s_add_u32 s48, s48, s47")
    p("s_sub_u32 s48, s48, 10")
    p("s_mul_i32 s51, s46, 3")
    p("s_add_u32 s51, s51, s47")
    p("s_add_u32 s51, s51, 5")
    p("s_cmp_lt_u32 s46, 2")
    p("s_cselect_b32 s50, s37, s51")
    p("s_cselect_b32 s52, 0, 5")
    p("s_and_b32 s3, s39, 3")
    p("s_mul_i32 s3, s3, 5")
    p("s_add_u32 s3, s3, 1")
    p("s_lshr_b32 s3, s3, 1")
    p("s_add_u32 s3, s3, s47")
    p("s_sub_u32 s54, s3, 10")
    p("s_min_u32 s3, s3, s54")
    if not ROT:
        p("s_mov_b32 s3, 0")
    p("v_and_b32 v3, 15, v1")
    p("v_lshrrev_b32 v4, 4, v1")
    p("v_lshlrev_b32 v5, 4, v1")
    p("v_lshlrev_b32 v6, 2, v1")
    p("s_lshl_b32 s40, s32, 12")
    p("s_lshl_b32 s53, s35, 8")
    p("s_lshl_b32 s54, s37, 3")
    p("s_add_u32 s53, s53, s54")
    p("s_add_u32 s53, s53, s32")
    p("s_cmp_lg_u32 s32, 7")
    with p.skip_if("s_cbranch_scc1"):
        p("s_getpc_b64 s[28:29]")
        p("s_mov_b32 s30, CODE_BYTES")
        p("s_mov_b32 s31, 0x20000")
        p("s_and_b32 s54, s39, 7")
        p("s_lshl_b32 s54, s54, 13")
        p("v_lshlrev_b32 v2, 7, v1")
        p("buffer_load_dword v254, v2, s[28:31], s54 offen")
    p("L_pc:")
    p("s_cmp_lt_u32 s47, s52")
    p("s_cbranch_scc1 L_ssm")


def after_kernarg(p):
    p("s_waitcnt lgkmcnt(0)")
    stamp(p, 1)
    srd(p, 4, KA["x"], 2621440)
    srd(p, 8, KA["ws"], WS_SIZE)
    srd(p, 12, KA["dbg"], 256)


def stat_row_loads(p):
    p("s_mul_i32 s54, s53, 1280")
    p.vmop(f"buffer_load_dwordx4 v[212:215], v5, s[4:7], s54 offen", "st")
    p.vmop(f"buffer_load_dword v216, v6, s[4:7], s54 offen offset:1024", "st")


def stats(p):
    p.wait(vm="st")
    for i in range(5):
        p(f"v_lshlrev_b32 v{220+2*i}, 16, v{212+i}")
        p(f"v_and_b32 v{221+2*i}, 0xffff0000, v{212+i}")
    p("v_add_f32 v230, v220, v221")
    for i in range(2, 10):
        p(f"v_add_f32 v230, v230, v{220+i}")
    wave_sum(p, 230, 55)
    p("v_mov_b32 v231, 0x3acccccd")
    p("v_mul_f32 v231, s55, v231")
    for i in range(10):
        p(f"v_sub_f32 v{220+i}, v{220+i}, v231")
    p("v_mul_f32 v230, v220, v220")
    for i in range(1, 10):
        p(f"v_fmac_f32 v230, v{220+i}, v{220+i}")
    wave_sum(p, 230, 55)
    p("v_mov_b32 v232, 0x3acccccd")
    p("v_mul_f32 v232, s55, v232")
    rne_bf16(p, 231)
    rne_bf16(p, 232)
    p("v_add_f32 v232, 0x3727c5ac, v232")
    rne_bf16(p, 232)
    p("v_sqrt_f32 v232, v232")
    rne_bf16(p, 232)
    p("v_rcp_f32 v232, v232")
    p("s_and_b32 s55, s53, 6")
    p("s_lshl_b32 s55, s55, 1")
    p("s_and_b32 s56, s53, 1")
    p("s_lshl_b32 s56, s56, 1")
    p("s_add_u32 s55, s55, s56")
    p("s_bfe_u32 s56, s53, 0x10003")
    p("s_add_u32 s55, s55, s56")
    p("s_and_b32 s56, s53, 0xfffffff0")
    p("s_add_u32 s55, s55, s56")
    p("s_lshl_b32 s55, s55, 2")
    p("v_mov_b32 v233, 0")
    p("s_lshl_b32 s57, s53, 2")
    p(f"s_add_u32 s57, s57, {WS_FLAG}")
    p("s_sub_u32 s56, s53, 1024")
    p("s_lshl_b32 s56, s56, 7")
    p(f"s_add_u32 s56, s56, {WS_CNT}")
    with p.atomic():
        p("s_cmp_lt_u32 s53, 1024")
        p("s_cselect_b32 s57, s57, s56")
        p("s_cmp_lt_u32 s53, 1040")
        p(f"s_cselect_b32 s57, s57, {WS_SIZE}")
        p(f"s_add_u32 s56, s55, {WS_R}")
        p("s_mov_b64 exec, 1")
        p.vmop(f"buffer_store_dword v231, off, s[8:11], s55 offset:{WS_M} sc1", "p0")
        p.vmop(f"buffer_store_dword v232, off, s[8:11], s56 sc1", "p0")
        p.vmop(f"buffer_store_dword v233, off, s[8:11], s57 sc1", "p0")
        p("s_mov_b64 exec, -1")


RT = 244


def retile_load(p):
    srd(p, 28, KA["w2"], 1728 * 1280)
    p("v_lshrrev_b32 v220, 5, v1")
    p("v_bfe_u32 v221, v1, 3, 2")
    p("v_bfe_u32 v222, v1, 1, 2")
    p("v_and_b32 v223, 1, v1")
    p("v_lshl_add_u32 v224, v220, 4, v222")
    p("v_lshl_add_u32 v224, v221, 2, v224")
    p("v_lshrrev_b32 v225, 1, v221")
    p("v_mul_u32_u24 v226, 80, v225")
    p("v_and_b32 v227, 1, v221")
    p("v_lshl_add_u32 v226, v227, 3, v226")
    p("v_lshl_add_u32 v226, v220, 2, v226")
    p("v_add3_u32 v226, v226, v222, 64")
    p("v_lshlrev_b32 v227, 5, v225")
    p("v_sub_u32 v227, v226, v227")
    p("v_lshlrev_b32 v223, 4, v223")

    def body(dst, tracked):
        p("s_mul_i32 s56, s55, 15535")
        p("s_lshr_b32 s56, s56, 22")
        p("s_mul_i32 s57, s56, 270")
        p("s_sub_u32 s57, s55, s57")
        p("s_mul_i32 s58, s57, 13108")
        p("s_lshr_b32 s58, s58, 16")
        p("s_mul_i32 s59, s58, 5")
        p("s_sub_u32 s59, s57, s59")
        p("s_mul_i32 s56, s56, 160")
        p("s_lshl_b32 s59, s59, 5")
        p("s_add_u32 s56, s56, s59")
        p("s_mul_i32 s57, s58, 13108")
        p("s_lshr_b32 s57, s57, 16")
        p("s_mul_i32 s59, s57, 5")
        p("s_sub_u32 s59, s58, s59")
        p("s_cmp_eq_u32 s58, 53")
        p("s_cselect_b32 s59, 4, s59")
        p("s_cselect_b64 s[62:63], -1, 0")
        p("v_cndmask_b32 v228, v226, v227, s[62:63]")
        p("s_mul_i32 s57, s57, 160")
        p("s_lshr_b32 s60, s59, 1")
        p("s_mul_i32 s60, s60, 80")
        p("s_and_b32 s61, s59, 1")
        p("s_lshl_b32 s61, s61, 5")
        p("s_add_u32 s60, s60, s61")
        p("s_cmp_eq_u32 s59, 4")
        p("s_cselect_b32 s60, 0, s60")
        p("s_cselect_b64 s[62:63], -1, 0")
        p("v_cndmask_b32 v228, v224, v228, s[62:63]")
        p("s_add_u32 s57, s57, s60")
        p("s_mul_i32 s57, s57, 1280")
        p("s_add_u32 s57, s57, s56")
        p("v_mul_u32_u24 v228, 1280, v228")
        p("v_add_u32 v228, v228, v223")
        t = f"buffer_load_dwordx4 {v4(dst)}, v228, s[28:31], s57 offen"
        if tracked:
            p.vmop(t, "rtl")
        else:
            p(t)
    p("s_add_u32 s55, s53, 2048")
    p("s_cmp_ge_u32 s53, 112")
    with p.skip_if("s_cbranch_scc1"):
        body(RT + 4, False)
    p("s_mov_b32 s55, s53")
    body(RT, True)


def retile_store(p):
    p("s_lshl_b32 s55, s53, 10")
    p(f"s_add_u32 s55, s55, {WS_W2T}")
    with p.atomic():
        p.wait(vm="rtl")
        p("s_cmp_ge_u32 s53, 112")
        with p.skip_if("s_cbranch_scc1"):
            p(f"s_add_u32 s56, s55, {2048*1024}")
            p(f"buffer_store_dwordx4 {v4(RT+4)}, v5, s[8:11], s56 offen sc1")
        p.vmop(f"buffer_store_dwordx4 {v4(RT)}, v5, s[8:11], s55 offen sc1", "p0")


def signal_phase0(p):
    p("s_cmp_lg_u32 s32, 0")
    with p.skip_if("s_cbranch_scc1"):
        p("s_lshr_b32 s55, s53, 3")
        p("v_mov_b32 v2, 1")
        p("s_mov_b64 exec, 1")
        p("buffer_store_byte v2, off, s[12:15], s55 sc1")
        p("s_mov_b64 exec, -1")


def check_phase0(p):
    p.wait(vm="pl")
    lab = p.label("Lp0")
    done = p.label("Lp0d")
    p("s_mov_b32 s60, 0")
    p(f"{lab}:")
    p("v_cmp_ne_u32 vcc, 0x01010101, v2")
    p("s_nop 1")
    p("s_cmp_eq_u64 vcc, 0")
    p(f"s_cbranch_scc1 {done}")
    p("s_sleep 2")
    p("buffer_load_dword v2, v6, s[12:15], 0 offen sc1")
    p("s_add_u32 s60, s60, 1")
    p(f"s_cmp_lt_u32 s60, {SPIN_MAX}")
    p("s_waitcnt vmcnt(0)")
    p(f"s_cbranch_scc1 {lab}")
    p(f"{done}:")


ONES, VX, VW, LA = 188, 192, 196, 200


class P1:
    def __init__(self, p, role):
        self.p = p
        self.mlp = role == "mlp"
        self.NT = 5 if self.mlp else 4
        self.ACC = 16
        self.CS = self.ACC + self.NT * 16
        self.FS = self.CS + self.NT * 4
        self.FSZ = 16 + self.NT * 4

    def xf(self, s, j):
        return self.FS + s * self.FSZ + j * 4

    def wf(self, s, t):
        return self.FS + s * self.FSZ + 16 + t * 4

    def acc(self, t, j):
        return self.ACC + (t * 4 + j) * 4 if self.mlp else self.ACC + (j * 4 + t) * 4

    def reads(self, st, u, s):
        la = LA + (st % 3) * 4
        r = []
        if self.mlp:
            toff = [0, 32, 10240, 10272]

            def wr(t):
                if t < 4:
                    return [[f"ds_read_b64_tr_b16 {v2(self.wf(s,t)+2*h)}, v{la+2} offset:{u*5120+h*2560+toff[t]}"] for h in range(2)]
                return [[f"ds_read_b64_tr_b16 {v2(self.wf(s,t)+2*h)}, v{la+3} offset:{u*5120+h*2560}"] for h in range(2)]
            r += wr(0)
            for j in range(4):
                r.append([f"ds_read_b128 {v4(self.xf(s,j))}, v{la+u} offset:{j*2048}"])
            for t in range(1, 5):
                r += wr(t)
        else:
            for j in range(4):
                r.append([f"ds_read_b128 {v4(self.xf(s,j))}, v{la+u} offset:{j*2048}"])
                r.append([f"ds_read_b128 {v4(self.wf(s,j))}, v{la+2+u} offset:{j*2048}"])
        return r

    def dma(self, st):
        p = self.p
        base = (st % 3) * SLOT
        tag = f"d{st}"
        sx, sw = (44, 45) if st % 2 == 0 else (46, 47)
        u = []
        first = [f"s_add_u32 s{sx}, s3, {st}", f"s_sub_u32 s{sw}, s{sx}, 10", f"s_min_u32 s{sx}, s{sx}, s{sw}",
                 f"s_mul_i32 s{sw}, s{sx}, {64*3456 if self.mlp else 128}", f"s_lshl_b32 s{sx}, s{sx}, 7"]
        if self.mlp:
            def third():
                p("s_cmp_ge_u32 s32, 4")
                with p.skip_if("s_cbranch_scc1"):
                    p(f"buffer_load_dwordx4 v{VW+2}, s[24:27], s{sw} offen lds")
            u.append((first + [f"s_add_u32 m0, s43, {base}"], [third]))
            first = []
        for i in range(4):
            u.append((first + [f"s_add_u32 m0, s40, {base + i*1024}"],
                      [lambda i=i: p.vmop(f"buffer_load_dwordx4 v{VX+i}, s[4:7], s{sx} offen lds", tag)]))
            first = []
        for i in range(2):
            u.append(([f"s_add_u32 m0, s{41+i}, {base}"],
                      [lambda i=i: p.vmop(f"buffer_load_dwordx4 v{VW+i}, s[{16+4*i}:{19+4*i}], s{sw} offen lds", tag)]))
        h = (len(u) + 1) // 2
        return u[:h], u[h:]

    def emit_units(self, units):
        for pre, post in units:
            emit(self.p, pre)
            emit(self.p, post)

    def mfmas(self, step, s):
        out = []
        for t in range(self.NT):
            for j in range(4):
                a = self.acc(t, j)
                c = "0" if step == 0 else v4(a)
                if self.mlp:
                    out.append(f"v_mfma_f32_16x16x32_bf16 {v4(a)}, {v4(self.wf(s,t))}, {v4(self.xf(s,j))}, {c}")
                else:
                    out.append(f"v_mfma_f32_16x16x32_bf16 {v4(a)}, {v4(self.xf(s,j))}, {v4(self.wf(s,t))}, {c}")
        return out

    def colsum(self, step, s):
        p = self.p
        p(f"s_cmp_lg_u32 s33, {step & 3}")
        with p.skip_if("s_cbranch_scc1"):
            for t in range(self.NT):
                d = self.CS + 4 * t
                c = "0" if step < 4 else v4(d)
                if self.mlp:
                    p(f"v_mfma_f32_16x16x32_bf16 {v4(d)}, {v4(self.wf(s,t))}, {v4(ONES)}, {c}")
                else:
                    p(f"v_mfma_f32_16x16x32_bf16 {v4(d)}, {v4(ONES)}, {v4(self.wf(s,t))}, {c}")

    def spread(self, units):
        n = self.NT * 4
        k = len(units)
        return {int((i + 0.6) * n / k): u for i, u in enumerate(units)} if k else {}

    def run(self, bg, stats_loads, cs_write, wpf):
        p = self.p
        stamp(p, 4)
        p.wait(vm="d0")
        p("s_barrier")
        stamp(p, 5)
        for u in self.reads(0, 0, 0):
            emit(p, u)
        a, b = self.dma(2)
        pend = a + b
        state = {"p0": False, "sig": False}
        bg = [[(lambda: state.__setitem__("p0", True))] if u == ["P0DONE"] else u for u in bg]
        for st in range(10):
            p.wait(lgkm=0)
            sched(p, self.mfmas(2 * st, 0), self.reads(st, 1, 1), self.spread(pend), bg)
            pend = []
            self.colsum(2 * st, 0)
            if st < 9:
                p.wait(vm=f"d{st+1}", lgkm=0)
                p("s_barrier")
                stamp(p, 6 + st, 2)
                if state["p0"] and not state["sig"] and "p0" not in p.vm:
                    signal_phase0(p)
                    state["sig"] = True
                    print("  phase-0 signal after barrier", st)
                a = []
                if st == 6:
                    assert state["sig"] and not bg
                    p.vmop("buffer_load_dword v2, v6, s[12:15], 0 offen sc1", "pl")
                if st == 7:
                    check_phase0(p)
                    stats_loads()
                    p2_wsetup(p)
                    a, pend = wpf.group(0)
                if st == 8:
                    a, pend = wpf.group(1)
                if st + 3 < 10:
                    a, pend = self.dma(st + 3)
                sched(p, self.mfmas(2 * st + 1, 1), self.reads(st + 1, 0, 0), self.spread(a), bg)
                self.colsum(2 * st + 1, 1)
            else:
                p.wait(lgkm=0)
                self.colsum(19, 1)
                sched(p, self.mfmas(19, 1), [], {10: ([], [cs_write])})
        p.wait(lgkm=0)
        p("s_barrier")
        stamp(p, 16)


def x_dma_offsets(p, ssm):
    p("v_lshrrev_b32 v7, 3, v1")
    p("v_and_b32 v8, 7, v1")
    p("s_lshl_b32 s55, s32, 5")
    p("s_lshl_b32 s56, s35, 8")
    for i in range(4):
        p(f"v_add_u32 v9, {8*i}, v7")
        p("v_add_u32 v9, s55, v9")
        p("v_bfe_u32 v10, v9, 1, 3")
        p("v_xor_b32 v10, v10, v8")
        if ssm:
            p("v_and_b32 v11, 0xc0, v9")
            p("v_bfe_u32 v12, v9, 2, 2")
            p("v_lshl_add_u32 v11, v12, 4, v11")
            p("v_and_b32 v12, 1, v9")
            p("v_lshl_add_u32 v11, v12, 3, v11")
            p("v_bfe_u32 v12, v9, 4, 2")
            p("v_lshl_add_u32 v11, v12, 1, v11")
            p("v_bfe_u32 v12, v9, 1, 1")
            p("v_add_u32 v9, v11, v12")
        p("v_add_u32 v9, s56, v9")
        p("v_mul_u32_u24 v9, 1280, v9")
        p(f"v_lshl_add_u32 v{VX+i}, v10, 4, v9")


def x_lds_addrs(p, k, base, srow):
    p(f"s_lshl_b32 s55, s{srow}, 13")
    p(f"s_add_u32 s55, s55, {base}")
    p("v_lshrrev_b32 v7, 1, v3")
    p("v_xor_b32 v7, v7, v4")
    p("v_lshlrev_b32 v7, 4, v7")
    p("v_lshl_add_u32 v7, v3, 7, v7")
    p("v_add_u32 v7, s55, v7")
    p("v_xor_b32 v8, 64, v7")
    for slot in range(3):
        p(f"v_add_u32 v{LA+slot*4+k}, {slot*SLOT}, v7")
        p(f"v_add_u32 v{LA+slot*4+k+1}, {slot*SLOT}, v8")


YW = 252


def wslot(t):
    return (t + 6) % NW


def p2_wsetup(p):
    p("s_and_b32 s96, s38, 3")
    p("s_lshl_b32 s96, s96, 2")
    p("s_and_b32 s55, s39, 3")
    p("s_add_u32 s96, s96, s55")
    p("s_lshr_b32 s97, s39, 2")
    p("s_lshl_b32 s40, s32, 10")
    p(f"s_mul_i32 s41, s97, {270*1024}")
    p("s_add_u32 s41, s41, s40")
    p(f"s_add_u32 s41, s41, {WS_W2T}")
    srd(p, 16, KA["cre"], 640 * 1280)
    srd(p, 20, KA["cim"], 640 * 1280)
    p("s_lshr_b32 s55, s32, 1")
    p("s_cmp_eq_u32 s55, 0")
    p(f"s_cselect_b32 s24, s{KA['cre']}, s{KA['cim']}")
    p(f"s_cselect_b32 s25, s{KA['cre']+1}, s{KA['cim']+1}")
    p("s_cselect_b32 s45, 9, -1")
    p(f"s_mov_b32 s26, {640*1280}")
    p("s_mov_b32 s27, 0x20000")
    p("s_add_u32 s45, s45, s55")
    p("s_lshl_b32 s45, s45, 7")
    p("s_lshl_b32 s43, s55, 7")
    p(f"s_mul_i32 s42, s55, {WSL}")
    p("s_and_b32 s56, s32, 1")
    p("s_add_u32 s56, s56, 8")
    p("s_lshl_b32 s57, s56, 10")
    p("s_add_u32 s42, s42, s57")
    p("v_lshrrev_b32 v14, 3, v1")
    p("v_and_b32 v15, 7, v1")
    p("s_mul_i32 s55, s97, 80")
    for i, sg in enumerate((32, 56)):
        p(f"s_lshl_b32 s57, s{sg}, 3")
        p(f"v_add_u32 v{YW+i}, s57, v14")
        p(f"v_bfe_u32 v254, v{YW+i}, 1, 3")
        p("v_xor_b32 v254, v254, v15")
        p(f"v_add_u32 v{YW+i}, s55, v{YW+i}")
        p(f"v_mul_u32_u24 v{YW+i}, 1280, v{YW+i}")
        p(f"v_lshl_add_u32 v{YW+i}, v254, 4, v{YW+i}")


def o_blk(t0, k):
    return [f"s_add_u32 m0, s40, {wslot(t0)*WSL + k*8192}", f"s_add_u32 s44, s41, {t0*10240 + k*8192}",
            "buffer_load_dwordx4 v5, s[8:11], s44 offen sc1 lds"]


def y_main(t):
    return [f"s_add_u32 m0, s40, {wslot(t)*WSL}", f"s_mov_b32 s44, {(t % 10)*128}",
            f"buffer_load_dwordx4 v{YW}, {'s[16:19]' if t < 10 else 's[20:23]'}, s44 offen lds"]


def y_extra(t0):
    if t0 == 9:
        return [f"s_add_u32 m0, s42, {wslot(t0)*WSL}", "s_nop 0", f"buffer_load_dwordx4 v{YW+1}, s[24:27], s45 offen lds"]
    return [f"s_add_u32 m0, s42, {wslot(t0)*WSL}", f"s_add_u32 s44, s43, {(t0 % 10)*128}",
            f"buffer_load_dwordx4 v{YW+1}, {'s[16:19]' if t0 < 10 else 's[20:23]'}, s44 offen lds"]


class WPF:
    def __init__(self, p, both):
        self.p = p
        self.both = both

    def unit(self, o, y, wlim_o=8, wlim_y=8):
        p = self.p

        def go():
            if self.both and o:
                p(f"s_cmp_ge_u32 s62, {wlim_o}")
                with p.skip_if("s_cbranch_scc1"):
                    emit(p, o)
            if y:
                if self.both or wlim_y < 8:
                    p(f"s_cmp_ge_u32 s63, {wlim_y}")
                    with p.skip_if("s_cbranch_scc1"):
                        emit(p, y)
                else:
                    emit(p, y)
            if y and wlim_y == 8 and (not self.both or (o and wlim_o == 8)):
                p.vm.append("w")
        return ([], [go])

    def group(self, g):
        p = self.p
        if g == 0:
            p("s_cmp_ge_u32 s38, 4")
            p("s_cselect_b32 s62, 8, 0")
            p("s_cselect_b32 s63, 0, 8")
            p("s_add_u32 s62, s62, s32")
            p("s_add_u32 s63, s63, s32")
            u = [self.unit(o_blk(0, k), y_main(k) if k < 4 else y_extra(0)) for k in range(5)]
            return u[:3], u[3:]
        if g == 1:
            u = [self.unit(o_blk(4, k), y_main(4 + k) if k < 5 else y_extra(4)) for k in range(6)]
            u.append(self.unit(o_blk(4, 6), y_extra(8), 2, 2))
            return u[:4], u[4:]
        u = [self.unit(o_blk(9, k), y_main(13 + k) if k < 2 else None) for k in range(7)]
        u.append(self.unit(o_blk(9, 7), y_extra(13), 4, 4))
        self.late = u

    def hook(self, n):
        for pre, post in self.late[:n]:
            emit(self.p, post)
        self.late = self.late[n:]


def p1_done(p, typ):
    stamp(p, 22)
    p("s_waitcnt vmcnt(0)")
    p("s_barrier")
    stamp(p, 23)
    p("s_cmp_lg_u32 s32, 0")
    with p.skip_if("s_cbranch_scc1"):
        p("s_lshl_b32 s55, s35, 8")
        p(f"s_add_u32 s55, s55, {WS_CNT + typ*128}")
        p("v_mov_b32 v2, 1")
        p("s_mov_b64 exec, 1")
        p("buffer_atomic_add v2, off, s[8:11], s55 sc1")
        p("s_mov_b64 exec, -1")
    p("s_branch L_p2" if typ == 0 else "s_branch L_p2y")


def role_mlp(p):
    L = P1(p, "mlp")
    CS, acc = L.CS, L.acc
    p("s_mov_b32 s36, s50")
    p("s_mul_i32 s46, s36, 80")
    p("s_add_u32 s47, s46, 32")
    p("s_add_u32 s48, s46, 64")
    p("s_cmp_eq_u32 s36, 21")
    p("s_cselect_b32 s48, s47, s48")
    p("s_cselect_b32 s47, s46, s47")
    x_dma_offsets(p, False)
    p("s_mul_i32 s49, s32, 3")
    p("s_lshl_b32 s50, s32, 1")
    p("s_add_u32 s50, s50, 4")
    p("s_cmp_lt_u32 s32, 4")
    p("s_cselect_b32 s49, s49, s50")
    for i in range(3):
        p(f"s_add_u32 s50, s49, {i}")
        p("s_lshl_b32 s51, s50, 10")
        p(f"s_add_u32 s{41+i}, s51, 32768")
        p("s_cmp_ge_u32 s50, 10")
        p("s_cselect_b32 s51, 10, 0")
        p(f"s_cselect_b32 s{57+i}, 1, 0")
        p("s_sub_u32 s50, s50, s51")
        p("s_lshl_b32 s50, s50, 6")
        p("v_add_u32 v7, s50, v1")
        p("v_mul_u32_u24 v8, 6554, v7")
        p("v_lshrrev_b32 v8, 16, v8")
        p("v_mul_u32_u24 v9, 10, v8")
        p("v_sub_u32 v9, v7, v9")
        p("v_and_b32 v10, 35, v8")
        p("v_bfe_u32 v11, v8, 2, 2")
        p("v_lshl_add_u32 v10, v11, 3, v10")
        p("v_bfe_u32 v11, v8, 4, 1")
        p("v_lshl_add_u32 v10, v11, 2, v10")
        p("v_and_b32 v11, 3, v9")
        p("v_lshlrev_b32 v11, 3, v11")
        p("v_add_u32 v12, s46, v11")
        p("v_add_u32 v13, s47, v11")
        p("v_cmp_gt_u32 vcc, 4, v9")
        p("v_cndmask_b32 v12, v13, v12, vcc")
        p("v_and_b32 v11, 1, v9")
        p(f"v_xor_b32 v11, s{57+i}, v11")
        p("v_lshlrev_b32 v11, 3, v11")
        p("v_add_u32 v13, s48, v11")
        p("v_cmp_gt_u32 vcc, 8, v9")
        p("v_cndmask_b32 v12, v13, v12, vcc")
        p("v_mul_u32_u24 v10, 3456, v10")
        p(f"v_lshl_add_u32 v{VW+i}, v12, 1, v10")
    after_kernarg(p)
    for i in range(3):
        p(f"s_cmp_eq_u32 s{57+i}, 1")
        p(f"s_cselect_b32 s{16+4*i}, s{KA['w3']}, s{KA['w1']}")
        p(f"s_cselect_b32 s{17+4*i}, s{KA['w3']+1}, s{KA['w1']+1}")
        p(f"s_mov_b32 s{18+4*i}, {640*3456}")
        p(f"s_mov_b32 s{19+4*i}, 0x20000")
    a, b = L.dma(0)
    L.emit_units(a + b)
    stamp(p, 2)
    stat_row_loads(p)
    x_lds_addrs(p, 0, 0, 33)
    p("v_lshrrev_b32 v7, 5, v1")
    p("v_mul_u32_u24 v7, 1280, v7")
    p("v_bfe_u32 v8, v1, 2, 3")
    p("v_mul_u32_u24 v8, 160, v8")
    p("v_add_u32 v7, v7, v8")
    p("v_add_u32 v7, 32768, v7")
    p("v_and_b32 v8, 3, v1")
    p("s_lshl_b32 s55, s34, 6")
    p("v_lshl_add_u32 v9, v8, 3, v7")
    p("v_add_u32 v9, s55, v9")
    p("v_lshrrev_b32 v10, 1, v8")
    p("v_mul_u32_u24 v11, 10240, v10")
    p("v_xor_b32 v10, s34, v10")
    p("v_lshl_add_u32 v11, v10, 4, v11")
    p("v_and_b32 v10, 1, v8")
    p("v_lshl_add_u32 v11, v10, 3, v11")
    p("v_add3_u32 v11, v11, v7, 64")
    p("v_add_u32 v11, 64, v11")
    for slot in range(3):
        p(f"v_add_u32 v{LA+slot*4+2}, {slot*SLOT}, v9")
        p(f"v_add_u32 v{LA+slot*4+3}, {slot*SLOT}, v11")
    for i in range(4):
        p(f"v_mov_b32 v{ONES+i}, 0x3f803f80")
    retile_load(p)
    stamp(p, 3)
    a, b = L.dma(1)
    L.emit_units(a + b)
    d = Defer(p)
    stats(d)
    retile_store(d)
    d.cut()
    d("P0DONE")
    d.cut()
    bg = d.done()
    p("s_lshl_b32 s55, s34, 2")
    p("s_add_u32 s55, s55, s33")
    p("s_mul_i32 s55, s55, 320")
    p(f"s_add_u32 s55, s55, {MISC}")
    p("v_lshlrev_b32 v7, 4, v4")
    p("v_add_u32 v8, s55, v7")
    p("s_mul_i32 s55, s34, 1280")
    p(f"s_add_u32 s55, s55, {MISC}")
    p("v_add_u32 v7, s55, v7")
    perm_pos(p, 9, 10)
    p("v_cmp_eq_u32 s[48:49], 0, v3")
    SM = 212

    def stats_loads():
        p("s_lshl_b32 s55, s35, 10")
        p("s_lshl_b32 s56, s33, 8")
        p("s_add_u32 s55, s55, s56")
        p(f"s_add_u32 s56, s55, {WS_R}")
        for j in range(4):
            p.vmop(f"buffer_load_dword v{SM+2*j}, v9, s[8:11], s55 offen offset:{WS_M + j*64} sc1", "sm")
            p.vmop(f"buffer_load_dword v{SM+2*j+1}, v9, s[8:11], s56 offen offset:{j*64} sc1", "sm")

    def cs_write():
        p("s_mov_b64 exec, s[48:49]")
        for t in range(5):
            p(f"ds_write_b128 v8, {v4(CS+4*t)} offset:{t*64}")
        p("s_mov_b64 exec, -1")

    wpf = WPF(p, True)
    L.run(bg, stats_loads, cs_write, wpf)
    wpf.group(2)
    T = L.FS
    for w in range(4):
        for t in range(5):
            dstr = CS + 4 * t if w == 0 else T + ((w - 1) * 5 + t) * 4
            p(f"ds_read_b128 {v4(dstr)}, v7 offset:{w*320 + t*64}")
    p.wait(vm="sm")
    wpf.hook(2)
    SQ = 220
    for j in range(4):
        p(f"v_mul_f32 v{SQ+2*j}, v{SM+2*j+1}, v{SM+2*j+1}")
        p(f"v_rcp_f32 v{SQ+2*j}, v{SQ+2*j}")
        p(f"v_mul_f32 v{SM+2*j+1}, 0xbfb8aa3b, v{SM+2*j+1}")
    p("s_lshl_b32 s55, s35, 4")
    p("s_lshl_b32 s56, s33, 2")
    p("s_add_u32 s55, s55, s56")
    p("s_mul_i32 s55, s55, 54")
    p("s_lshr_b32 s56, s36, 1")
    p("s_mul_i32 s56, s56, 5")
    p("s_and_b32 s57, s36, 1")
    p("s_lshl_b32 s57, s57, 1")
    p("s_add_u32 s57, s57, s34")
    p("s_add_u32 s58, s56, s57")
    p("s_add_u32 s58, s58, s55")
    p("s_lshl_b32 s58, s58, 10")
    p(f"s_add_u32 s58, s58, {WS_HH}")
    p("s_add_u32 s59, s56, 4")
    p("s_min_u32 s59, s59, 53")
    p("s_add_u32 s59, s59, s55")
    p("s_lshl_b32 s59, s59, 10")
    p("s_lshl_b32 s57, s57, 8")
    p("s_add_u32 s59, s59, s57")
    p(f"s_add_u32 s59, s59, {WS_HH}")
    p("s_cmp_eq_u32 s36, 21")
    p("s_cselect_b32 s60, s34, 0")
    p("s_cmp_eq_u32 s60, 1")
    p(f"s_cselect_b32 s58, {WS_SIZE}, s58")
    p.wait(lgkm=0)
    for w in range(1, 4):
        for t in range(5):
            for h in range(2):
                p(f"v_pk_add_f32 {v2(CS+4*t+2*h)}, {v2(CS+4*t+2*h)}, {v2(T+((w-1)*5+t)*4+2*h)}")

    def center(t, j):
        for h in range(2):
            a = acc(t, j) + 2 * h
            p(f"v_pk_fma_f32 {v2(a)}, {v2(CS+4*t+2*h)}, {v2(SM+2*j)}, {v2(a)} op_sel_hi:[1,0,1] neg_lo:[0,1,0] neg_hi:[0,1,0]")

    def silu_mul(pairs):
        for g, u, A, S, tmp in pairs:
            for h in range(2):
                p(f"v_pk_mul_f32 {v2(tmp+2*h)}, {v2(A)}, {v2(g+2*h)} op_sel:[1,0] op_sel_hi:[1,1]")
        for g, u, A, S, tmp in pairs:
            for r in range(4):
                p(f"v_exp_f32 v{tmp+r}, v{tmp+r}")
        for g, u, A, S, tmp in pairs:
            for h in range(2):
                p(f"v_pk_mul_f32 {v2(g+2*h)}, {v2(g+2*h)}, {v2(u+2*h)}")
        for g, u, A, S, tmp in pairs:
            for h in range(2):
                p(f"v_pk_fma_f32 {v2(tmp+2*h)}, {v2(tmp+2*h)}, {v2(S)}, {v2(S)} op_sel_hi:[1,0,0]")
        for g, u, A, S, tmp in pairs:
            for r in range(4):
                p(f"v_rcp_f32 v{tmp+r}, v{tmp+r}")
        for g, u, A, S, tmp in pairs:
            for h in range(2):
                p(f"v_pk_mul_f32 {v2(g+2*h)}, {v2(g+2*h)}, {v2(tmp+2*h)}")

    for j in range(4):
        for t in range(4):
            center(t, j)
        silu_mul([(acc(t, j), acc(t + 2, j), SM + 2 * j, SQ + 2 * j, T + 4 * t) for t in range(2)])
        o = T + 8 + (j & 1) * 4
        for t in range(2):
            for h in range(2):
                p(f"v_cvt_pk_bf16_f32 v{o+2*t+h}, v{acc(t,j)+2*h}, v{acc(t,j)+2*h+1}")
        p(f"buffer_store_dwordx4 {v4(o)}, v5, s[8:11], s58 offen sc1")
        if j < 3:
            p(f"s_add_u32 s58, s58, {54*1024}")
            wpf.hook(2)
    for j in range(4):
        center(4, j)
    p("v_cmp_gt_u32 vcc, 32, v1")
    for jj in range(2):
        j = 2 * jj
        for r in range(4):
            p(f"v_permlane32_swap_b32 v{acc(4,j)+r}, v{acc(4,j+1)+r}")
        p(f"v_cndmask_b32 v{SM+2*j+1}, v{SM+2*j+3}, v{SM+2*j+1}, vcc")
        p(f"v_cndmask_b32 v{SQ+2*j}, v{SQ+2*j+2}, v{SQ+2*j}, vcc")
    silu_mul([(acc(4, 2 * jj), acc(4, 2 * jj + 1), SM + 4 * jj, SQ + 4 * jj, T + 16 + 4 * jj) for jj in range(2)])
    for jj in range(2):
        for h in range(2):
            p(f"v_cvt_pk_bf16_f32 v{T+24+2*jj+h}, v{acc(4,2*jj)+2*h}, v{acc(4,2*jj)+2*h+1}")
    p("v_and_b32 v9, 1, v4")
    p("v_lshrrev_b32 v10, 1, v4")
    p("v_lshl_add_u32 v9, v9, 1, v10")
    p(f"v_mul_u32_u24 v9, {54*1024}, v9")
    p("v_lshl_add_u32 v9, v3, 4, v9")
    p(f"v_permlane16_swap_b32 v{T+24}, v{T+26}")
    p(f"v_permlane16_swap_b32 v{T+25}, v{T+27}")
    p(f"buffer_store_dwordx4 {v4(T+24)}, v9, s[8:11], s59 offen sc1")
    p1_done(p, 0)


def role_ssm(p):
    L = P1(p, "ssm")
    CS, acc = L.CS, L.acc
    p("L_ssm:")
    p.fence()
    p.vm = []
    p("s_mov_b32 s36, s48")
    x_dma_offsets(p, True)
    p("s_lshl_b32 s55, s36, 6")
    p("s_lshl_b32 s56, s34, 5")
    p("s_add_u32 s55, s55, s56")
    p("s_lshl_b32 s50, s55, 1")
    p("s_and_b32 s56, s32, 1")
    p("s_lshl_b32 s56, s56, 4")
    p("s_add_u32 s55, s55, s56")
    p("s_lshl_b32 s41, s32, 11")
    p("s_add_u32 s41, s41, 32768")
    p("s_add_u32 s42, s41, 1024")
    p("v_lshrrev_b32 v7, 3, v1")
    p("v_and_b32 v8, 7, v1")
    for i in range(2):
        p(f"v_add_u32 v9, {8*i}, v7")
        p("v_lshrrev_b32 v10, 1, v9")
        p("v_xor_b32 v10, v10, v8")
        p("v_add_u32 v9, s55, v9")
        p("v_mul_u32_u24 v9, 1280, v9")
        p(f"v_lshl_add_u32 v{VW+i}, v10, 4, v9")
    p("v_lshlrev_b32 v7, 1, v3")
    after_kernarg(p)
    p("s_bitcmp1_b32 s32, 1")
    for s in (16, 20):
        p(f"s_cselect_b32 s{s}, s{KA['bim']}, s{KA['bre']}")
        p(f"s_cselect_b32 s{s+1}, s{KA['bim']+1}, s{KA['bre']+1}")
        p(f"s_mov_b32 s{s+2}, {640*1280}")
        p(f"s_mov_b32 s{s+3}, 0x20000")
    PR = 236
    a, b = L.dma(0)
    L.emit_units(a + b)
    stamp(p, 2)
    stat_row_loads(p)
    for k, nm in enumerate(["lre", "lim", "ldt"]):
        srd(p, 28, KA[nm], 1280)
        for ct in range(2):
            p.vmop(f"buffer_load_ushort v{PR+2*k+ct}, v7, s[28:31], s50 offen offset:{32*ct}", "st")
    x_lds_addrs(p, 0, 0, 33)
    x_lds_addrs(p, 2, 32768, 34)
    for i in range(4):
        p(f"v_mov_b32 v{ONES+i}, 0x3f803f80")
    p("s_mul_i32 s51, s35, 5120")
    p("s_lshl_b32 s52, s36, 1")
    p("s_add_u32 s52, s52, s34")
    p("s_lshl_b32 s52, s52, 8")
    p("s_add_u32 s51, s51, s52")
    p(f"s_add_u32 s51, s51, {WS_AGG}")
    p(f"s_add_u32 s52, s52, {WS_AGG}")
    for i in range(4):
        p(f"v_mov_b32 v{160+i}, -1")
    p("s_mov_b64 exec, 0xffff")
    p.vmop("buffer_store_dwordx4 v[160:163], v5, s[8:11], s51 offen sc1", "p0")
    p("s_mov_b64 exec, -1")
    retile_load(p)
    stamp(p, 3)
    a, b = L.dma(1)
    L.emit_units(a + b)
    A2, BR, LAM, L8, L16, L32, L64, C2 = 160, 162, 164, 168, 172, 176, 180, 184
    d = Defer(p)
    stats(d)
    retile_store(d)
    d.cut()
    d("P0DONE")
    d.cut()
    for ct in range(2):
        lre, lim, ldt = PR + ct, PR + 2 + ct, PR + 4 + ct
        for r in (lre, lim, ldt):
            d(f"v_lshlrev_b32 v{r}, 16, v{r}")
        d(f"v_mul_f32 v{ldt}, {hex(LOG2E)}, v{ldt}")
        d(f"v_exp_f32 v{ldt}, v{ldt}")
        rne_bf16(d, ldt)
        d(f"v_mul_f32 v{A2+ct}, v{ldt}, v{lre}")
        d(f"v_mul_f32 v{A2+ct}, {hex(LOG2E)}, v{A2+ct}")
        d(f"v_mul_f32 v{BR+ct}, v{ldt}, v{lim}")
        d(f"v_mul_f32 v{BR+ct}, {hex(INV2PI)}, v{BR+ct}")
        for dd, n in ((LAM, 1.0), (L8, 8.0), (L16, 16.0), (L32, 32.0), (L64, 64.0)):
            cpow(d, dd + 2 * ct, flit(n), A2 + ct, BR + ct, 224)
        d(f"v_mul_f32 v226, v{lre}, v{lre}")
        d(f"v_fmac_f32 v226, v{lim}, v{lim}")
        d("v_rcp_f32 v226, v226")
        d(f"v_add_f32 v227, -1.0, v{LAM+2*ct}")
        d("v_add_f32 v226, v226, v226")
        d(f"v_mul_f32 v228, v227, v{lre}")
        d(f"v_fmac_f32 v228, v{LAM+2*ct+1}, v{lim}")
        d(f"v_mul_f32 v229, v{LAM+2*ct+1}, v{lre}")
        d(f"v_fma_f32 v229, -v227, v{lim}, v229")
        d(f"v_mul_f32 v{C2+2*ct}, v228, v226")
        d(f"v_mul_f32 v{C2+2*ct+1}, v229, v226")
    bg = d.done()
    p("s_lshl_b32 s55, s32, 8")
    p(f"s_add_u32 s55, s55, {MISC}")
    p("v_lshlrev_b32 v7, 4, v3")
    p("v_add_u32 v10, s55, v7")
    p("s_lshl_b32 s55, s34, 10")
    p(f"s_add_u32 s55, s55, {MISC}")
    p("v_add_u32 v8, s55, v7")
    p("v_lshlrev_b32 v9, 6, v4")
    SM, SR = 212, 228

    def stats_loads():
        p("s_lshl_b32 s55, s35, 10")
        p("s_lshl_b32 s56, s33, 8")
        p("s_add_u32 s55, s55, s56")
        p(f"s_add_u32 s56, s55, {WS_R}")
        for m in range(4):
            p.vmop(f"buffer_load_dwordx4 {v4(SM+4*m)}, v9, s[8:11], s55 offen offset:{WS_M+16*m} sc1", "sm")
            p.vmop(f"buffer_load_dwordx4 {v4(SR+4*m)}, v9, s[8:11], s56 offen offset:{16*m} sc1", "sm")

    def cs_write():
        for t in range(1, 4):
            p(f"v_mov_b32 v{CS+t}, v{CS+4*t}")
        p("s_mov_b64 exec, 0xffff")
        p(f"ds_write_b128 v10, {v4(CS)}")
        p("s_mov_b64 exec, -1")

    wpf = WPF(p, False)
    L.run(bg, stats_loads, cs_write, wpf)
    wpf.group(2)
    T = L.FS
    for w in range(4):
        p(f"ds_read_b128 {v4(T+4*w)}, v8 offset:{w*256}")
    p.wait(vm="sm")
    wpf.hook(8)
    p.wait(lgkm=0)
    for w in range(1, 4):
        for h in range(2):
            p(f"v_pk_add_f32 {v2(T+2*h)}, {v2(T+2*h)}, {v2(T+4*w+2*h)}")

    def RE(ct, i):
        return acc(ct, i >> 1) + 2 * (i & 1)

    def IM(ct, i):
        return acc(2 + ct, i >> 1) + 2 * (i & 1)

    def bc(k):
        return f"op_sel:[{k},0,0] op_sel_hi:[{k},1,1]"
    NEG0 = "neg_lo:[1,0,0] neg_hi:[1,0,0]"

    for i in range(8):
        for t in range(4):
            a = acc(t, i >> 1) + 2 * (i & 1)
            p(f"v_pk_fma_f32 {v2(a)}, {v2(T+(t&2))}, {v2(SM+2*i)}, {v2(a)} {bc(t&1)} {NEG0}")
        for t in range(4):
            a = acc(t, i >> 1) + 2 * (i & 1)
            p(f"v_pk_mul_f32 {v2(a)}, {v2(a)}, {v2(SR+2*i)}")
        if i:
            for ct in range(2):
                p(f"v_pk_fma_f32 {v2(RE(ct,i))}, {v2(LAM+2*ct)}, {v2(RE(ct,i-1))}, {v2(RE(ct,i))} {bc(0)}")
                p(f"v_pk_fma_f32 {v2(IM(ct,i))}, {v2(LAM+2*ct)}, {v2(IM(ct,i-1))}, {v2(IM(ct,i))} {bc(0)}")
            for ct in range(2):
                p(f"v_pk_fma_f32 {v2(RE(ct,i))}, {v2(LAM+2*ct)}, {v2(IM(ct,i-1))}, {v2(RE(ct,i))} {bc(1)} {NEG0}")
                p(f"v_pk_fma_f32 {v2(IM(ct,i))}, {v2(LAM+2*ct)}, {v2(RE(ct,i-1))}, {v2(IM(ct,i))} {bc(1)}")
    EA, X, Y, X2, Y2, E64 = 188, 192, 196, 200, 204, 208
    for ct in range(2):
        p(f"v_mov_b32 v{EA+2*ct}, v{RE(ct,7)}")
        p(f"v_mov_b32 v{EA+2*ct+1}, v{IM(ct,7)}")
        p(f"v_mov_b32 v{X+2*ct}, v{RE(ct,7)+1}")
        p(f"v_mov_b32 v{X+2*ct+1}, v{IM(ct,7)+1}")
    cmacs(p, [(X + 2 * ct, EA + 2 * ct, L8 + 2 * ct, X + 2 * ct) for ct in range(2)])
    for k in range(2):
        p(f"v_mov_b64 {v2(Y+2*k)}, {v2(X+2*k)}")
    for k in range(4):
        p(f"v_permlane16_swap_b32 v{X+k}, v{Y+k}")
    cmacs(p, [(X2 + 2 * ct, X + 2 * ct, L16 + 2 * ct, Y + 2 * ct) for ct in range(2)])
    for k in range(2):
        p(f"v_mov_b64 {v2(Y2+2*k)}, {v2(X2+2*k)}")
    for k in range(4):
        p(f"v_permlane32_swap_b32 v{X2+k}, v{Y2+k}")
    cmacs(p, [(E64 + 2 * ct, X2 + 2 * ct, L32 + 2 * ct, Y2 + 2 * ct) for ct in range(2)])
    p("s_mov_b64 exec, 0xffff")
    p(f"ds_write_b128 v10, {v4(E64)} offset:2048")
    p("s_mov_b64 exec, -1")
    p.wait(lgkm=0)
    p("s_barrier")
    AG = T + 4
    for w in range(4):
        p(f"ds_read_b128 {v4(AG+4*w)}, v8 offset:{2048 + w*256}")
    p.wait(lgkm=0)
    for w in range(1, 4):
        cmacs(p, [(AG + 4 * w + 2 * ct, AG + 4 * (w - 1) + 2 * ct, L64 + 2 * ct, AG + 4 * w + 2 * ct) for ct in range(2)])
    p("s_cmp_lg_u32 s33, 3")
    with p.skip_if("s_cbranch_scc1"):
        for k in range(4):
            p(f"v_min_u32 v{E64+k}, 0xfffffffe, v{AG+12+k}")
        p("s_mov_b64 exec, 0xffff")
        p(f"buffer_store_dwordx4 {v4(E64)}, v5, s[8:11], s51 offen sc1")
        p("s_mov_b64 exec, -1")
    stamp(p, 19)
    for k in range(4):
        p(f"v_mov_b32 v{Y2+k}, 0")
    for w in range(1, 4):
        p(f"s_cmp_eq_u32 s33, {w}")
        p("s_cselect_b64 s[62:63], -1, 0")
        for k in range(4):
            p(f"v_cndmask_b32 v{Y2+k}, v{Y2+k}, v{AG+4*(w-1)+k}, s[62:63]")
    K0, K1, LQ, BE = T + 20, T + 24, T + 28, Y
    p("v_and_b32 v11, 1, v4")
    p("v_cmp_eq_u32 vcc, 1, v11")
    p("v_cmp_lt_u32 s[62:63], 1, v4")
    for ct in range(2):
        p(f"v_cndmask_b32 v{K0+2*ct}, 0, v{X+2*ct}, vcc")
        p(f"v_cndmask_b32 v{K0+2*ct+1}, 0, v{X+2*ct+1}, vcc")
        p(f"v_cndmask_b32 v{BE+2*ct}, 1.0, v{L16+2*ct}, vcc")
        p(f"v_cndmask_b32 v{BE+2*ct+1}, 0, v{L16+2*ct+1}, vcc")
        p(f"v_cndmask_b32 v{BE+2*ct}, 0, v{BE+2*ct}, s[62:63]")
        p(f"v_cndmask_b32 v{BE+2*ct+1}, 0, v{BE+2*ct+1}, s[62:63]")
        cmac(p, K0 + 2 * ct, X2 + 2 * ct, BE + 2 * ct, K0 + 2 * ct)
    p("v_lshlrev_b32 v11, 4, v4")
    p("v_cvt_f32_u32 v12, v11")
    p("s_lshl_b32 s55, s33, 6")
    p("v_add_u32 v11, s55, v11")
    p("v_cvt_f32_u32 v13, v11")
    for ct in range(2):
        cpow(p, LQ + 2 * ct, "v12", A2 + ct, BR + ct, 14)
        cpow(p, K1 + 2 * ct, "v13", A2 + ct, BR + ct, 14)
        cmac(p, K0 + 2 * ct, Y2 + 2 * ct, LQ + 2 * ct, K0 + 2 * ct)
    MU = T + 4
    PA = 10
    for k in range(2):
        p(f"v_add_u32 v12, {4*k+1}, v4")
        p("v_sub_u32 v13, s35, v12")
        p("v_cmp_ge_u32 vcc, s35, v12")
        p("v_cndmask_b32 v13, 0, v13, vcc")
        p("v_lshlrev_b32 v13, 8, v13")
        p("v_cvt_f32_u32 v13, v13")
        p(f"v_add_u32 v12, {4*k}, v4")
        p("v_mul_u32_u24 v12, 5120, v12")
        p("v_add_u32 v12, v12, v7")
        p(f"v_mov_b32 v2, {WS_SIZE}")
        p(f"v_cndmask_b32 v{PA+k}, v2, v12, vcc")
        for ct in range(2):
            cpow(p, MU + 4 * k + 2 * ct, "v13", A2 + ct, BR + ct, 14)
    V0 = T + 12

    def agg_loads():
        for k in range(2):
            p(f"buffer_load_dwordx4 {v4(V0+4*k)}, v{PA+k}, s[8:11], s52 offen sc1")
    agg_loads()

    def PP(ct, i):
        return 212 + (ct * 8 + i) * 2

    def GR(ct, i):
        return T + 32 + (ct * 8 + i) * 2
    for i in range(8):
        cmacs(p, [(PP(ct, i), (C2 + 2 * ct) if i == 0 else PP(ct, i - 1), LAM + 2 * ct, None) for ct in range(2)])
    for i in range(8):
        for ct in range(2):
            p(f"v_pk_mul_f32 {v2(GR(ct,i))}, {v2(RE(ct,i))}, {v2(C2+2*ct)} op_sel_hi:[1,0]")
        for ct in range(2):
            p(f"v_pk_fma_f32 {v2(GR(ct,i))}, {v2(C2+2*ct)}, {v2(IM(ct,i))}, {v2(GR(ct,i))} {bc(1)} {NEG0}")
        for ct in range(2):
            p(f"v_pk_mul_f32 {v2(IM(ct,i))}, {v2(IM(ct,i))}, {v2(C2+2*ct)} op_sel_hi:[1,0] neg_lo:[1,0] neg_hi:[1,0]")
        for ct in range(2):
            p(f"v_pk_fma_f32 {v2(IM(ct,i))}, {v2(C2+2*ct)}, {v2(RE(ct,i))}, {v2(IM(ct,i))} {bc(1)} {NEG0}")
    p("s_lshl_b32 s55, s32, 12")
    p(f"s_add_u32 s55, s55, {TRS}")
    p("v_lshl_add_u32 v12, v4, 10, v7")
    p("v_add_u32 v12, s55, v12")
    p("v_xor_b32 v13, 64, v12")
    p("v_add_u32 v13, 512, v13")
    p("v_bfe_u32 v14, v1, 1, 1")
    p("v_bfe_u32 v8, v1, 2, 2")
    p("v_lshl_add_u32 v8, v4, 3, v8")
    p("v_lshlrev_b32 v9, 2, v14")
    p("v_xor_b32 v8, v8, v9")
    p("v_lshlrev_b32 v8, 4, v8")
    p("v_lshl_add_u32 v8, v14, 9, v8")
    p("v_and_b32 v9, 1, v1")
    p("v_lshl_add_u32 v8, v9, 3, v8")
    p("v_add_u32 v8, s55, v8")
    p("v_xor_b32 v9, 64, v8")
    p("s_lshl_b32 s55, s35, 4")
    p("s_lshl_b32 s56, s33, 2")
    p("s_add_u32 s55, s55, s56")
    p("s_mul_i32 s55, s55, 40")
    p("s_lshl_b32 s56, s36, 1")
    p("s_add_u32 s55, s55, s56")
    p("s_add_u32 s55, s55, s34")
    p("s_lshl_b32 s55, s55, 10")
    p(f"s_add_u32 s58, s55, {WS_H}")
    stamp(p, 20)
    lab = p.label("Lag")
    done = p.label("Lagd")
    p("s_mov_b32 s60, 0")
    p(f"{lab}:")
    p("s_waitcnt vmcnt(0)")
    p(f"v_max_u32 v2, v{V0}, v{V0+1}")
    p(f"v_max3_u32 v2, v2, v{V0+2}, v{V0+3}")
    p(f"v_max3_u32 v2, v2, v{V0+4}, v{V0+5}")
    p(f"v_max3_u32 v2, v2, v{V0+6}, v{V0+7}")
    p("v_cmp_eq_u32 vcc, -1, v2")
    p("s_nop 1")
    p("s_cmp_eq_u64 vcc, 0")
    p(f"s_cbranch_scc1 {done}")
    agg_loads()
    p("s_add_u32 s60, s60, 1")
    p(f"s_cmp_lt_u32 s60, {SPIN_MAX}")
    p(f"s_cbranch_scc1 {lab}")
    p("s_waitcnt vmcnt(0)")
    p(f"{done}:")
    p.vm = []
    stamp(p, 21)
    cmacs(p, [(X + 2 * ct, V0 + 2 * ct, MU + 2 * ct, None) for ct in range(2)])
    cmacs(p, [(X + 2 * ct, V0 + 4 + 2 * ct, MU + 4 + 2 * ct, X + 2 * ct) for ct in range(2)])
    for sw in ("v_permlane16_swap_b32", "v_permlane32_swap_b32"):
        for k in range(2):
            p(f"v_mov_b64 {v2(Y+2*k)}, {v2(X+2*k)}")
        for k in range(4):
            p(f"{sw} v{X+k}, v{Y+k}")
        for k in range(2):
            p(f"v_pk_add_f32 {v2(X+2*k)}, {v2(X+2*k)}, {v2(Y+2*k)}")
    cmacs(p, [(K0 + 2 * ct, X + 2 * ct, K1 + 2 * ct, K0 + 2 * ct) for ct in range(2)])
    cmacs(p, [(EA + 2 * ct, K0 + 2 * ct, L8 + 2 * ct, EA + 2 * ct) for ct in range(2)])
    for ct in range(2):
        p(f"v_mov_b32 v{X2+2*ct}, v{K0+2*ct}")
        p(f"v_mov_b32 v{X2+2*ct+1}, v{EA+2*ct}")
        p(f"v_mov_b32 v{Y2+2*ct}, v{K0+2*ct+1}")
        p(f"v_mov_b32 v{Y2+2*ct+1}, v{EA+2*ct+1}")
    OUTR = T
    for part in range(2):
        f = GR if part == 0 else IM
        for ct in range(2):
            CR, CI = v2(X2 + 2 * ct), v2(Y2 + 2 * ct)
            for i in range(8):
                P = v2(PP(ct, i))
                if part == 0:
                    p(f"v_pk_fma_f32 {v2(GR(ct,i))}, {P}, {CR}, {v2(GR(ct,i))} {bc(0)}")
                else:
                    p(f"v_pk_fma_f32 {v2(IM(ct,i))}, {P}, {CI}, {v2(IM(ct,i))} {bc(0)} {NEG0}")
            for i in range(8):
                P = v2(PP(ct, i))
                if part == 0:
                    p(f"v_pk_fma_f32 {v2(GR(ct,i))}, {P}, {CI}, {v2(GR(ct,i))} {bc(1)} {NEG0}")
                else:
                    p(f"v_pk_fma_f32 {v2(IM(ct,i))}, {P}, {CR}, {v2(IM(ct,i))} {bc(1)} {NEG0}")
            for seg in range(2):
                o = acc(ct, part * 2 + seg)
                for k in range(4):
                    p(f"v_cvt_pk_bf16_f32 v{o+k}, v{f(ct,2*k)+seg}, v{f(ct,2*k+1)+seg}")
                p(f"ds_write_b128 v{12+seg}, {v4(o)} offset:{ct*256}")
        for qs in range(4):
            for h in range(2):
                p(f"ds_read_b64_tr_b16 {v2(OUTR+(part*4+qs)*4+2*h)}, v{8+h} offset:{qs*1024}")
        if part == 1:
            for pp in range(2):
                for qs in range(4):
                    n = (1 - pp) * 12 + (3 - qs) * 2 if pp == 0 else (3 - qs) * 2
                    if pp == 0:
                        if qs == 0:
                            p.wait(lgkm=12)
                    else:
                        p.wait(lgkm=(3 - qs) * 2)
                    p(f"s_add_u32 s55, s58, {(qs*40 + pp*20)*1024}")
                    p(f"buffer_store_dwordx4 {v4(OUTR+(pp*4+qs)*4)}, v5, s[8:11], s55 offen sc1")
    p1_done(p, 1)


DA = 8
ACC2, WF2, AR2, LA2, XR, DR, ST, SV = 16, 56, 96, 160, 164, 174, 184, 188


def p2_role(p, O):
    NST = 27 if O else 20
    NKS = 54 if O else 40

    def acc(dt, j):
        return ACC2 + (dt * 2 + j) * 4

    def wf(st, dt):
        return WF2 + (st & 1) * 20 + dt * 4

    def af(st, j):
        return AR2 + (st % DA) * 8 + j * 4

    def reads(st):
        slot = wslot(st)
        la = LA2 + slot // 5
        o = (slot % 5) * WSL
        if O:
            return [[f"ds_read_b64_tr_b16 {v2(wf(st,dt)+2*h)}, v{la} offset:{o + dt*1024 + h*512}"] for dt in range(5) for h in range(2)]
        return [[f"ds_read_b128 {v4(wf(st,dt))}, v{la} offset:{o + dt*2048}"] for dt in range(5)]

    def aload(st, j):
        return [f"s_add_u32 s48, s{46+j}, {st*2048}",
                lambda: p.vmop(f"buffer_load_dwordx4 {v4(af(st,j))}, v5, s[8:11], s48 offen sc1", f"a{st}")]

    def mfmas(st):
        out = []
        for dt in range(5):
            for j in range(2):
                c = "0" if st == 0 else v4(acc(dt, j))
                out.append(f"v_mfma_f32_16x16x32_bf16 {v4(acc(dt,j))}, {v4(wf(st,dt))}, {v4(af(st,j))}, {c}")
        return out

    def tracked(u):
        return u[:-1] + [lambda: p.vmop(u[-1], "w")]

    def optional(u, wlim):
        def go():
            p(f"s_cmp_ge_u32 s32, {wlim}")
            with p.skip_if("s_cbranch_scc1"):
                emit(p, u)
        return [go]

    def refill(st):
        u = []
        if O:
            g = st // 3
            if st % 3 == 2 and g < 4:
                u.append(optional(o_blk(15 + 3 * g, 3), 6))
                u += [tracked(o_blk(15 + 3 * g, i)) for i in range(3)]
        elif st == 0:
            u += [tracked(y_main(t)) for t in range(9, 13)] + [tracked(y_extra(9))]
        elif st == 4:
            u.append(optional(y_extra(19), 2))
            u.append(tracked(y_extra(15)))
            u += [tracked(y_main(t)) for t in range(15, 20)]
        return u

    bar_at = set(range(2, 24, 3)) if O else {4, 8, 14}

    p.vm = []
    p("s_lshl_b32 s50, s96, 3")
    p("s_lshl_b32 s51, s33, 1")
    p("s_add_u32 s50, s50, s51")
    p("s_add_u32 s50, s50, s34")
    for j in range(2):
        p(f"s_xor_b32 s55, s50, {j}")
        p(f"s_mul_i32 s55, s55, {NKS}")
        p("s_add_u32 s55, s55, s34")
        p("s_lshl_b32 s55, s55, 10")
        p(f"s_add_u32 s{46+j}, s55, {WS_HH if O else WS_H}")
    if O:
        p("s_mul_i32 s55, s34, 5120")
        p("v_lshlrev_b32 v7, 3, v1")
        p("v_add_u32 v7, s55, v7")
    else:
        p("s_lshl_b32 s55, s34, 2")
        p("v_add_u32 v7, s55, v4")
        p("v_lshrrev_b32 v8, 1, v3")
        p("v_xor_b32 v7, v7, v8")
        p("v_lshlrev_b32 v7, 4, v7")
        p("v_lshl_add_u32 v7, v3, 7, v7")
    for k in range(3):
        p(f"v_add_u32 v{LA2+k}, {k*5*WSL}, v7")
    p("s_mul_i32 s51, s50, 20480")
    p("s_mul_i32 s52, s97, 160")
    p("s_add_u32 s51, s51, s52")
    p("v_mul_u32_u24 v9, 1280, v3")
    p("v_lshl_add_u32 v9, v4, 3, v9")
    for dt in range(5):
        p(f"buffer_load_dwordx2 {v2(XR+2*dt)}, v9, s[4:7], s51 offen offset:{dt*32}")
    if not O:
        srd(p, 28, KA["dsk"], 1280)
        p("v_lshlrev_b32 v10, 3, v4")
        for dt in range(5):
            p(f"buffer_load_dwordx2 {v2(DR+2*dt)}, v10, s[28:31], s52 offen offset:{dt*32}")
        perm_pos(p, 11, 12)
        p("s_lshl_b32 s53, s50, 6")
        p(f"buffer_load_dword v{ST}, v11, s[8:11], s53 offen offset:{WS_M} sc1")
        p(f"s_add_u32 s53, s53, {WS_R}")
        p(f"buffer_load_dword v{ST+1}, v11, s[8:11], s53 offen sc1")
    else:
        srd(p, 12, KA["out"], 5242880)
    p("s_lshl_b32 s54, s96, 3")
    p("s_add_u32 s54, s54, s97")
    p("s_lshl_b32 s54, s54, 3")
    p("s_add_u32 s54, s54, s32")
    p("s_mul_i32 s56, s54, 5120")
    p(f"s_add_u32 s56, s56, {WS_S}")
    p("s_add_u32 s58, s56, 4096")
    p("s_lshl_b32 s57, s54, 2")
    p(f"s_add_u32 s57, s57, {WS_FLAG}")
    ex = 6 * WSL if O else 0
    p("s_mul_i32 s55, s32, 5120")
    p(f"s_add_u32 s55, s55, {ex}")
    p("v_add_u32 v12, s55, v5")
    p("s_xor_b32 s55, s32, 4")
    p("s_mul_i32 s55, s55, 5120")
    p(f"s_add_u32 s55, s55, {ex}")
    p("v_add_u32 v13, s55, v5")
    p("s_lshr_b32 s55, s96, 1")
    p("s_lshl_b32 s55, s55, 8")
    p(f"s_add_u32 s55, s55, {WS_CNT + (0 if O else 128)}")
    for u in reads(0):
        emit(p, u)
    stamp(p, 24)
    lab = p.label("Lc")
    done = p.label("Lcd")
    p("s_mov_b32 s60, 0")
    p(f"{lab}:")
    p("buffer_load_dword v2, off, s[8:11], s55 sc1")
    p("s_waitcnt vmcnt(0)")
    p("v_readfirstlane_b32 s61, v2")
    p("s_nop 1")
    p(f"s_cmp_eq_u32 s61, {22 if O else 10}")
    p(f"s_cbranch_scc1 {done}")
    p("s_sleep 1")
    p("s_add_u32 s60, s60, 1")
    p(f"s_cmp_lt_u32 s60, {SPIN_MAX}")
    p(f"s_cbranch_scc1 {lab}")
    p(f"{done}:")
    stamp(p, 25)
    for st in range(DA):
        for j in range(2):
            emit(p, aload(st, j))
        if st == 1:
            p("s_barrier")
    p("s_mov_b32 s59, 0")
    for st in range(NST):
        p.wait(vm=f"a{st}", lgkm=0)
        if st == 0:
            stamp(p, 26)
        if st in bar_at:
            p("s_barrier")
        fill = reads(st + 1) if st + 1 < NST else []
        rf = refill(st)
        at = {}
        for i, u in enumerate(rf):
            at[1 + i] = ([], u)
        if O and st == NST - 6:
            at[9] = ([], [lambda: p.vmop("buffer_load_dword v2, off, s[8:11], s57 sc1", "fl")])
        sched(p, mfmas(st), fill, at)
        if st + DA < NST:
            for j in range(2):
                emit(p, aload(st + DA, j))
        if O and st == NST - 3:
            p.wait(vm="fl")
            p("v_readfirstlane_b32 s59, v2")
            p("s_nop 1")
            p("s_cmp_lg_u32 s59, 1")
            with p.skip_if("s_cbranch_scc1"):
                for dt in range(5):
                    p(f"buffer_load_dwordx4 {v4(SV+4*dt)}, v5, s[8:11], s{56 if dt < 4 else 58} offen offset:{(dt%4)*1024} sc1")
    stamp(p, 40)
    for dt in range(5):
        p(f"ds_write_b128 v12, {v4(acc(dt,1))} offset:{dt*1024}")
    for dt in range(5):
        unpack4(p, AR2 + 4 * dt, XR + 2 * dt)
    if not O:
        for dt in range(5):
            x4 = AR2 + 4 * dt
            d4 = AR2 + 20 + 4 * dt
            unpack4(p, d4, DR + 2 * dt)
            for r in range(4):
                p(f"v_sub_f32 v{x4+r}, v{x4+r}, v{ST}")
            for r in range(4):
                p(f"v_mul_f32 v{x4+r}, v{x4+r}, v{ST+1}")
            for r in range(4):
                p(f"v_fmac_f32 v{acc(dt,0)+r}, v{x4+r}, v{d4+r}")
    else:
        p("s_mul_i32 s51, s50, 40960")
        p("s_mul_i32 s52, s97, 320")
        p("s_add_u32 s51, s51, s52")
        p("v_mul_u32_u24 v9, 2560, v3")
        p("v_lshl_add_u32 v9, v4, 4, v9")
    p.wait(lgkm=0)
    p("s_barrier")
    for dt in range(5):
        p(f"ds_read_b128 {v4(WF2+4*dt)}, v13 offset:{dt*1024}")
    if not O:
        for dt in range(5):
            p.wait(lgkm=4 - dt)
            a = acc(dt, 0)
            for h in range(2):
                p(f"v_pk_add_f32 {v2(a+2*h)}, {v2(a+2*h)}, {v2(WF2+4*dt+2*h)}")
            p(f"buffer_store_dwordx4 {v4(a)}, v5, s[8:11], s{56 if dt < 4 else 58} offen offset:{(dt%4)*1024} sc1")
        p("v_mov_b32 v2, 1")
        stamp(p, 43)
        p("s_waitcnt vmcnt(0)")
        stamp(p, 44)
        p("s_mov_b64 exec, 1")
        p("buffer_store_dword v2, off, s[8:11], s57 sc1")
        stamp_flush(p)
        return
    T = WF2 + 20
    for dt in range(5):
        p.wait(lgkm=4 - dt)
        a = acc(dt, 0)
        for h in range(2):
            p(f"v_pk_add_f32 {v2(a+2*h)}, {v2(a+2*h)}, {v2(WF2+4*dt+2*h)}")
        t = T + 4 * dt
        for r in range(4):
            p(f"v_mul_f32 v{t+r}, 0xbfb8aa3b, v{a+r}")
        for r in range(4):
            p(f"v_exp_f32 v{t+r}, v{t+r}")
    for dt in range(5):
        t = T + 4 * dt
        for r in range(4):
            p(f"v_add_f32 v{t+r}, 1.0, v{t+r}")
        for r in range(4):
            p(f"v_rcp_f32 v{t+r}, v{t+r}")
    for dt in range(5):
        a = acc(dt, 0)
        t = T + 4 * dt
        for h in range(2):
            p(f"v_pk_mul_f32 {v2(a+2*h)}, {v2(a+2*h)}, {v2(t+2*h)}")
    stamp(p, 41)
    have = p.label("Lhave")
    lab = p.label("Lfl")
    got = p.label("Lgot")
    p("s_cmp_eq_u32 s59, 1")
    p(f"s_cbranch_scc1 {have}")
    p("s_mov_b32 s60, 0")
    p(f"{lab}:")
    p("buffer_load_dword v2, off, s[8:11], s57 sc1")
    p("s_waitcnt vmcnt(0)")
    p("v_readfirstlane_b32 s61, v2")
    p("s_nop 1")
    p("s_cmp_eq_u32 s61, 1")
    p(f"s_cbranch_scc1 {got}")
    p("s_sleep 1")
    p("s_add_u32 s60, s60, 1")
    p(f"s_cmp_lt_u32 s60, {SPIN_MAX}")
    p(f"s_cbranch_scc1 {lab}")
    p(f"{got}:")
    for dt in range(5):
        p(f"buffer_load_dwordx4 {v4(SV+4*dt)}, v5, s[8:11], s{56 if dt < 4 else 58} offen offset:{(dt%4)*1024} sc1")
    p(f"{have}:")
    p("s_waitcnt vmcnt(0)")
    stamp(p, 42)
    for dt in range(5):
        a = acc(dt, 0)
        for h in range(2):
            p(f"v_pk_fma_f32 {v2(a+2*h)}, {v2(a+2*h)}, {v2(SV+4*dt+2*h)}, {v2(AR2+4*dt+2*h)}")
        p(f"buffer_store_dwordx4 {v4(a)}, v9, s[12:15], s51 offen offset:{dt*64}")
    stamp(p, 43)
    if PROF:
        p("s_waitcnt vmcnt(0)")
    stamp(p, 44)
    stamp_flush(p)


def main():
    p = Prog()
    hdr = open("recurrent_scan__ssm_conv_s5__glu_gated_swiglu__prompt.s.ref").read().split("\n")
    hdr = [l for l in hdr if l.startswith(";") and "@launch" not in l]
    out = "\n".join(hdr) + "\n"
    out += "; @launch grid=(256,1,1) block=(512,1,1) lds=163840\n"
    out += '.amdgcn_target "amdgcn-amd-amdhsa--gfx950"\n.text\n'
    p(f".globl {KNAME}")
    p(".p2align 8")
    p(f".type {KNAME},@function")
    p(f"{KNAME}:")
    prologue(p)
    role_mlp(p)
    role_ssm(p)
    p("L_p2:")
    p.fence()
    p("s_cmp_ge_u32 s38, 4")
    p("s_cbranch_scc1 L_p2y")
    p2_role(p, True)
    p("s_branch L_end")
    p("L_p2y:")
    p.fence()
    p2_role(p, False)
    p("L_end:")
    p("s_endpgm")
    p(".set CODE_BYTES, L_end - L_pc")
    out += p.finalize()
    out += '.section .rodata,"a"\n' + kernel_desc(KNAME)
    path = sys.argv[1] if len(sys.argv) > 1 else "recurrent_scan__ssm_conv_s5__glu_gated_swiglu__prompt.s"
    open(path, "w").write(out)
    print("wrote", path, len(out), "bytes")


if __name__ == "__main__":
    main()
```
